```python
import torch

def _softmax(x, axis=-1):
    return torch.softmax(x, dim=axis)
def _gelu(x):
    return torch.nn.functional.gelu(x, approximate="tanh")
def _silu(x):
    return torch.nn.functional.silu(x)
def _sigmoid(x):
    return torch.sigmoid(x)
def _layernorm(x, axis=-1, eps=1e-5):
    m = x.mean(dim=axis, keepdim=True)
    v = x.var(dim=axis, keepdim=True, unbiased=False)
    return (x - m) / torch.sqrt(v + eps)
def _scatter_add(tgt, idx, src, axis=0):
    return tgt.clone().index_add_(axis, idx, src)
def _segment_sum(src, seg, n):
    out = torch.zeros((n,) + src.shape[1:], dtype=src.dtype)
    return out.index_add_(0, seg, src)
def _pad(x, pw):
    flat = tuple(v for pair in reversed(pw) for v in pair)
    return torch.nn.functional.pad(x, flat)

kernel_name = 'standalone__paged_block_table_kv_pagedattention__decode'

def setup_inputs():

    _w = (lambda a: (lambda t: t.to(torch.bfloat16) if t.is_floating_point() else t)(torch.as_tensor(a)))
    B, Hq, Hkv, Sq, Skv, D = 1, 32, 32, 1, 4096, 128
    bs = 16
    nbps = max(1, Skv // bs)
    num_phys = B * nbps + 4
    bt = torch.randperm(num_phys)[: B * nbps].reshape(B, nbps).to(torch.int64)
    cl = (nbps * bs - (torch.arange(1, B + 1, dtype=torch.int64) * 2654435761) % max(1, nbps * bs // 2)).to(torch.int64)
    return {
        "q": _w((lambda *s: torch.randn(*s, dtype=torch.bfloat16) * 0.8)(B, Hq, Sq, D)),
        "k_cache": _w((lambda *s: torch.randn(*s, dtype=torch.bfloat16) * 0.8)(num_phys, bs, Hkv, D)),
        "v_cache": _w((lambda *s: torch.randn(*s, dtype=torch.bfloat16) * 0.05)(num_phys, bs, Hkv, D)),
        "block_table": _w(bt),
        "context_lens": _w(cl),
    }

def reference(q, k_cache, v_cache, block_table, context_lens):
    B, Hq, Sq, D = q.shape
    bs = k_cache.shape[1]
    Hkv = k_cache.shape[2]
    nbps = block_table.shape[1]
    Skv = nbps * bs
    bt = block_table.reshape(-1)
    k = (lambda x, *d: x.permute(*d))(k_cache[bt].reshape(B, Skv, Hkv, D), 0, 2, 1, 3)
    v = (lambda x, *d: x.permute(*d))(v_cache[bt].reshape(B, Skv, Hkv, D), 0, 2, 1, 3)
    g = Hq // Hkv
    qg = q.reshape(B, Hkv, g, Sq, D)
    scores = torch.einsum("bhgqd,bhkd->bhgqk", qg, k) * (D ** -0.5)
    pos = torch.arange(Skv)
    msk = pos[None, :] < context_lens[:, None]
    scores = torch.where(msk[:, None, None, None, :], scores, -1e9)
    p = _softmax(scores, axis=-1)
    out = torch.einsum("bhgqk,bhkd->bhgqd", p, v)
    return out.reshape(B, Hq, Sq, D)
```

```python
import sys, argparse

NAME = "standalone__paged_block_table_kv_pagedattention__decode"

HEADER = """; Kernarg layout for this problem (64 bytes, ptrs only, base s[0:1]):
"""


def gen(S=8, NW=8, nt="", hmajor=True, stamps=False, pin=0):
    NWH = S * NW
    NL = 1024 // NWH
    assert NL <= 16 and NL >= 4 and NL % 4 == 0
    NWG = 32 * S
    logS = S.bit_length() - 1
    logNW = NW.bit_length() - 1
    LDS_ACC = 0
    LDS_MAX = NW * 1024
    LDS_L = LDS_MAX + NW * 16
    LDS_BYTES = LDS_L + NW * 16
    ML_OFF = 0x40000 * (S // 8 if S > 8 else 1)
    CNT_OFF = 128
    KB = 64
    VB = KB + 4 * NL
    OFFB = 24
    TB = 40
    NVGPR = max(VB + 4 * NL, 64 + 4 * S + 4, 64 + 4 * NW)
    ntf = (" " + nt.replace("_", " ")) if nt else ""
    o = []
    A = o.append
    def write_stamps(n=9):
        A("  s_memrealtime s[96:97]")
        A("  s_waitcnt lgkmcnt(0)")
        A("  s_lshl_b32 s36, s2, 6")
        A(f"  s_add_u32 s36, s36, {128<<20}")
        A("  v_mov_b32 v7, s36")
        for k in range(n):
            A(f"  v_mov_b32 v8, s{80+2*k}")
            A(f"  global_store_dword v7, v8, s[18:19] offset:{4*k}")
    A(HEADER.rstrip("\n"))
    A(f"; @launch grid=({NWG},1,1) block=({64*NW},1,1) lds={LDS_BYTES}")
    A('.amdgcn_target "amdgcn-amd-amdhsa--gfx950"')
    A(".text")
    A(f".globl {NAME}_kernel")
    A(".p2align 8")
    A(f".type {NAME}_kernel,@function")
    A(f"{NAME}_kernel:")
    A(f"  s_cmp_ge_u32 s2, {NWG}")
    A("  s_cbranch_scc1 L_end")
    A("  s_load_dwordx16 s[4:19], s[0:1], 0")
    if stamps or pin:
        A("  s_memrealtime s[80:81]")
        A("  s_mov_b32 s94, 0")
    A("  v_lshrrev_b32 v7, 6, v0")
    A("  v_and_b32 v2, 15, v0                ; c")
    A("  v_readfirstlane_b32 s30, v7         ; w")
    A("  v_bfe_u32 v3, v0, 4, 2              ; r")
    A("  v_and_b32 v1, 63, v0                ; lane")
    if hmajor:
        A(f"  s_lshr_b32 s28, s2, {logS}          ; h")
        A(f"  s_and_b32 s29, s2, {S-1}            ; split")
    else:
        A("  s_and_b32 s28, s2, 31               ; h")
        A("  s_lshr_b32 s29, s2, 5               ; split")
    A(f"  s_lshl_b32 s31, s29, {logNW}")
    A("  s_add_u32 s31, s31, s30             ; gw")
    A(f"  s_lshl_b32 s37, s28, {logS}")
    A("  s_add_u32 s37, s37, s29")
    A(f"  v_and_b32 v7, {NL-1}, v2")
    A(f"  v_mul_u32_u24 v18, {NWH}, v7")
    A("  s_and_b32 s36, s31, 0xfffffffc      ; (gw>>2)*4")
    A("  v_add_u32 v18, s36, v18")
    A("  s_lshl_b32 s36, s28, 8")
    A("  v_lshlrev_b32 v19, 4, v2")
    A("  v_add_u32 v19, s36, v19")
    A("  s_lshl_b32 s36, s31, 2")
    A("  v_add_u32 v4, s36, v3               ; v_tr")
    A("  v_and_b32 v5, 15, v4")
    A("  v_lshlrev_b32 v5, 13, v5")
    A("  v_add_u32 v5, v5, v19")
    A(f"  v_mul_u32_u24 v17, {4*NWH}, v2")
    A("  v_add_u32 v17, v17, v4              ; token(r,c)")
    A("  s_lshl_b32 s36, s37, 10")
    A("  v_lshlrev_b32 v56, 4, v1")
    A("  v_add_u32 v56, s36, v56")
    A("  s_lshl_b32 s36, s37, 3")
    A(f"  s_add_u32 s36, s36, {ML_OFF}")
    A("  v_mov_b32 v57, s36")
    A("  s_lshl_b32 s36, s28, 2")
    A(f"  s_add_u32 s36, s36, {CNT_OFF}")
    A("  v_mov_b32 v58, s36")
    A("  v_mov_b32 v20, -1")
    A("  v_mov_b32 v21, -1")
    A("  v_mov_b32 v22, -1")
    A("  v_mov_b32 v23, -1")
    A("  v_mov_b32 v59, 1")
    A("  s_waitcnt lgkmcnt(0)")
    A("  s_load_dword s32, s[12:13], 0       ; context_len")
    A("  global_load_dword v6, v18, s[10:11]")
    A("  global_load_dwordx4 v[8:11], v19, s[4:5]")
    if stamps:
        A("  s_memrealtime s[82:83]")
    A("  s_cmp_lg_u32 s30, 0")
    A("  s_cbranch_scc1 L_noclear")
    A("  global_store_dwordx4 v56, v[20:23], s[18:19] sc1")
    A("  global_store_dwordx2 v57, v[20:21], s[18:19] sc1")
    A("L_noclear:")
    A("  s_mov_b32 s20, s6")
    A("  s_and_b32 s21, s7, 0xffff")
    A("  s_mov_b32 s22, 34078720")
    A("  s_mov_b32 s23, 0x00020000")
    A("  s_mov_b32 s24, s8")
    A("  s_and_b32 s25, s9, 0xffff")
    A("  s_mov_b32 s26, 34078720")
    A("  s_mov_b32 s27, 0x00020000")
    A("  s_mov_b32 s35, 0x3e0293ee           ; log2(e)/sqrt(128)")
    A("  v_and_b32 v7, 1, v2")
    A("  v_mov_b32 v60, 0xffff")
    A("  v_lshlrev_b32 v7, 4, v7")
    A("  v_lshlrev_b32 v60, v7, v60")
    A("  v_bfe_u32 v7, v2, 1, 2")
    for w in range(4):
        A(f"  v_cmp_eq_u32_e64 s[{40+2*w}:{41+2*w}], {w}, v7")
    A("  v_cmp_lt_u32_e64 s[48:49], 7, v2")
    A("  v_mov_b32 v61, 0xffff0000")
    for w in range(4):
        A(f"  v_cndmask_b32_e64 v{12+w}, 0, v60, s[{40+2*w}:{41+2*w}]")
    A("  v_cndmask_b32_e64 v16, 0, v61, s[48:49]")
    A("  v_mov_b32 v62, 0x40000000")
    A("  s_lshl_b32 s36, s30, 4")
    A("  v_lshlrev_b32 v63, 2, v3")
    A("  v_add_u32 v63, s36, v63             ; (w*4+r)*4")
    A("  s_lshl_b32 s36, s30, 10")
    A("  v_lshlrev_b32 v61, 4, v1")
    A("  v_add_u32 v60, s36, v61")
    A("  s_waitcnt vmcnt(0) lgkmcnt(0)")
    if stamps:
        A("  s_memrealtime s[84:85]")
    A("  s_cmp_lt_i32 s32, 1")
    A("  s_cselect_b32 s33, 4096, s32")
    A("  s_cselect_b32 s34, 0, 0xf149f2ca")
    A("  s_min_u32 s33, s33, 4096            ; N_eff")
    A("  v_lshlrev_b32 v6, 17, v6")
    A("  v_cmp_gt_u32 vcc, s33, v17")
    A("  s_cmp_lg_u32 s30, 0")
    A("  s_cbranch_scc1 L_noatom")
    A("  s_mov_b64 s[38:39], exec")
    A("  s_mov_b64 exec, 1")
    A("  global_atomic_add v58, v59, s[16:17] sc1")
    A("  s_mov_b64 exec, s[38:39]")
    A("L_noatom:")
    A("  v_cndmask_b32 v6, v62, v6, vcc")
    A("  v_mov_b32 v17, s34                  ; fill")
    A("  s_nop 0")
    for i in range(NL):
        A(f"  v_add_u32_dpp v{OFFB+i}, v6, v5 row_newbcast:{i} row_mask:0xf bank_mask:0xf")
        A(f"  buffer_load_dwordx4 v[{KB+4*i}:{KB+4*i+3}], v{OFFB+i}, s[20:23], 0 offen{ntf}")
    for i in range(NL):
        A(f"  buffer_load_dwordx4 v[{VB+4*i}:{VB+4*i+3}], v{OFFB+i}, s[24:27], 0 offen{ntf}")
    if stamps:
        A("  s_memrealtime s[86:87]")
    A("  s_mov_b32 s36, s32")
    for i in range(NL):
        A(f"  v_cmp_gt_i32_e64 s[{40+2*i}:{41+2*i}], s36, v4")
        if i != NL - 1:
            A(f"  s_sub_i32 s36, s36, {4*NWH}")
    for g in range(NL // 4):
        A(f"  s_waitcnt vmcnt({2*NL - 4*g - 4})")
        for j in range(4):
            for a in range(4):
                i = 4 * g + a
                c = "0" if j == 0 else f"v{TB+i}"
                A(f"  v_dot2_f32_bf16 v{TB+i}, v{KB+4*i+j}, v{8+j}, {c}")
        for sh in (8, 4, 2, 1):
            for a in range(4):
                i = 4 * g + a
                A(f"  v_add_f32_dpp v{TB+i}, v{TB+i}, v{TB+i} row_ror:{sh} row_mask:0xf bank_mask:0xf")
        for a in range(4):
            i = 4 * g + a
            A(f"  v_mul_f32 v{TB+i}, s35, v{TB+i}")
        for a in range(4):
            i = 4 * g + a
            A(f"  v_cndmask_b32_e64 v{TB+i}, v17, v{TB+i}, s[{40+2*i}:{41+2*i}]")
        i = 4 * g
        if g == 0:
            A(f"  v_max3_f32 v7, v{TB+i}, v{TB+i+1}, v{TB+i+2}")
            A(f"  v_max_f32 v7, v7, v{TB+i+3}")
        else:
            A(f"  v_max3_f32 v7, v7, v{TB+i}, v{TB+i+1}")
            A(f"  v_max3_f32 v7, v7, v{TB+i+2}, v{TB+i+3}")
    if stamps:
        A("  s_memrealtime s[88:89]")
    A(f"  ds_write_b32 v63, v7 offset:{LDS_MAX}")
    A("  v_mov_b32 v18, 0")
    A("  s_waitcnt lgkmcnt(0)")
    A("  s_barrier")
    for k0 in range(0, NW, 4):
        for k in range(4):
            A(f"  ds_read_b128 v[{24+4*k}:{27+4*k}], v18 offset:{LDS_MAX+16*(k0+k)}")
        A("  s_waitcnt lgkmcnt(0)")
        for k in range(8):
            A(f"  v_max3_f32 v7, v7, v{24+2*k}, v{25+2*k}")
    for i in range(NL):
        A(f"  v_sub_f32 v{TB+i}, v{TB+i}, v7")
    for i in range(NL):
        A(f"  v_exp_f32 v{TB+i}, v{TB+i}")
    A("  s_nop 0")
    A(f"  v_add_f32 v19, v{TB}, v{TB+1}")
    for i in range(2, NL):
        A(f"  v_add_f32 v19, v19, v{TB+i}")
    A(f"  ds_write_b32 v63, v19 offset:{LDS_L}")
    for i in range(NL):
        b = KB + 4 * i
        A(f"  v_cvt_pk_bf16_f32 v{b}, v{TB+i}, v{TB+i}")
        A(f"  v_and_b32 v{b}, v{b}, v16")
        A(f"  v_sub_f32 v{b}, v{TB+i}, v{b}")
        A(f"  v_cvt_pk_bf16_f32 v{b+3}, v{b}, v{b}")
        A(f"  v_and_b32 v{b}, v{b+3}, v12")
        A(f"  v_and_b32 v{b+1}, v{b+3}, v13")
        A(f"  v_and_b32 v{b+2}, v{b+3}, v14")
        A(f"  v_and_b32 v{b+3}, v{b+3}, v15")
    A("  s_waitcnt lgkmcnt(0)")
    A("  s_barrier")
    A("  s_cmp_lg_u32 s30, 0")
    A("  s_cbranch_scc1 L_noml")
    assert NW <= 8 or True
    nread = NW
    first = True
    for k0 in range(0, nread, 8):
        kk = min(8, nread - k0)
        for k in range(kk):
            A(f"  ds_read_b128 v[{24+4*k}:{27+4*k}], v18 offset:{LDS_L+16*(k0+k)}")
        A("  s_waitcnt lgkmcnt(0)")
        for k in range(kk):
            for j in range(4):
                if first:
                    A(f"  v_mov_b32 v9, v{24}")
                    first = False
                else:
                    A(f"  v_add_f32 v9, v9, v{24+4*k+j}")
    A("  v_min_u32 v8, -2, v7")
    A("  v_min_u32 v9, -2, v9")
    A("  global_store_dwordx2 v57, v[8:9], s[18:19] sc1")
    A("  s_cmp_lg_u32 s29, 0")
    A("  s_cbranch_scc1 L_noml")
    A("  global_load_dword v19, v58, s[16:17] sc1")
    A("L_noml:")
    if stamps:
        A("  s_memrealtime s[90:91]")
    for i in range(NL):
        A(f"  s_waitcnt vmcnt({NL-1-i})")
        c = "0" if i == 0 else "v[20:23]"
        A(f"  v_mfma_f32_16x16x32_bf16 v[20:23], v[{KB+4*i}:{KB+4*i+3}], v[{VB+4*i}:{VB+4*i+3}], {c}")
    if stamps:
        A("  s_memrealtime s[92:93]")
    A("  s_nop 7")
    A(f"  ds_write_b128 v60, v[20:23] offset:{LDS_ACC}")
    A("  s_waitcnt lgkmcnt(0)")
    A("  s_barrier")
    A("  s_cmp_lg_u32 s30, 0")
    A("  s_cbranch_scc1 L_end")
    for k in range(1, NW):
        A(f"  ds_read_b128 v[{KB+4*k}:{KB+4*k+3}], v61 offset:{LDS_ACC+1024*k}")
    for k in range(1, NW):
        A(f"  s_waitcnt lgkmcnt({min(15, NW-1-k)})")
        for j in range(4):
            A(f"  v_add_f32 v{20+j}, v{20+j}, v{KB+4*k+j}")
    A("  s_cmp_eq_u32 s29, 0")
    A("  s_cbranch_scc1 L_cons")
    for j in range(4):
        A(f"  v_min_u32 v{20+j}, -2, v{20+j}")
    A("  global_store_dwordx4 v56, v[20:23], s[18:19] sc1")
    if stamps:
        write_stamps()
    A("  s_endpgm")
    A("L_cons:")
    A(f"  v_and_b32 v7, {S-1}, v1")
    A("  v_lshlrev_b32 v7, 3, v7")
    A("  v_add_u32 v57, v57, v7")
    for q in range(1, (S + 3) // 4):
        A(f"  v_add_u32 v{8+q}, {4096*q}, v56")
    A("L_cchk:")
    A("  s_waitcnt vmcnt(0)")
    A("  v_readfirstlane_b32 s36, v19")
    A(f"  s_cmp_eq_u32 s36, {S}")
    A("  s_cbranch_scc1 L_poll")
    A("  global_load_dword v19, v58, s[16:17] sc1")
    A("  s_branch L_cchk")
    A("L_poll:")
    for j in range(1, S):
        ar = "v56" if j < 4 else f"v{8+j//4}"
        A(f"  global_load_dwordx4 v[{64+4*j}:{67+4*j}], {ar}, s[18:19] offset:{(j%4)*1024} sc1")
    A("  global_load_dwordx2 v[62:63], v57, s[18:19] sc1")
    A("  s_waitcnt vmcnt(0)")
    regs = [62, 63] + [64 + 4 * j + k for j in range(1, S) for k in range(4)]
    A(f"  v_max_u32 v7, v{regs[0]}, v{regs[1]}")
    for k in range(2, len(regs), 2):
        A(f"  v_max3_u32 v7, v7, v{regs[k]}, v{regs[k+1]}")
    A("  v_cmp_eq_u32 vcc, -1, v7")
    A("  s_cbranch_vccnz L_poll")
    if stamps:
        A("  s_memrealtime s[94:95]")
    A("  v_mov_b32 v7, v62")
    sh = S // 2
    while sh >= 1:
        A("  s_nop 1")
        A(f"  v_max_f32_dpp v7, v7, v7 row_ror:{sh} row_mask:0xf bank_mask:0xf")
        sh //= 2
    A("  v_sub_f32 v62, v62, v7")
    A("  v_exp_f32 v62, v62")
    A("  s_nop 0")
    A("  v_mul_f32 v63, v62, v63")
    sh = S // 2
    while sh >= 1:
        A("  s_nop 1")
        A(f"  v_add_f32_dpp v63, v63, v63 row_ror:{sh} row_mask:0xf bank_mask:0xf")
        sh //= 2
    A("  v_rcp_f32 v63, v63")
    A("  s_nop 0")
    A("  v_mul_f32 v62, v62, v63")
    A("  s_nop 1")
    for k in range(4):
        A(f"  v_mul_f32_dpp v{20+k}, v62, v{20+k} row_newbcast:0 row_mask:0xf bank_mask:0xf")
    for j in range(1, S):
        for k in range(4):
            A(f"  v_fmac_f32_dpp v{20+k}, v62, v{64+4*j+k} row_newbcast:{j} row_mask:0xf bank_mask:0xf")
    A("  v_and_b32 v7, 1, v3")
    A("  v_lshlrev_b32 v7, 3, v7")
    A("  v_lshrrev_b32 v8, 1, v3")
    A("  v_lshl_add_u32 v7, v8, 2, v7")
    A("  v_lshl_add_u32 v7, v2, 4, v7")
    A("  s_lshl_b32 s36, s28, 8")
    A("  v_add_u32 v7, s36, v7")
    A("  v_permlane32_swap_b32 v20, v22")
    A("  v_permlane32_swap_b32 v21, v23")
    A("  s_nop 1")
    A("  v_add_f32 v20, v20, v22")
    A("  v_add_f32 v21, v21, v23")
    A("  v_cvt_pk_bf16_f32 v20, v20, v21")
    A("  global_store_dword v7, v20, s[14:15]")
    if pin:
        A(f"  s_add_u32 s80, s80, {pin*100}")
        A("L_spin:")
        A("  s_memrealtime s[96:97]")
        A("  s_waitcnt lgkmcnt(0)")
        A("  s_sub_u32 s98, s96, s80")
        A("  s_cmp_lt_i32 s98, 0")
        A("  s_cbranch_scc1 L_spin")
    if stamps:
        write_stamps()
    A("L_end:")
    A("  s_endpgm")
    A('.section .rodata,"a"')
    A(".p2align 6")
    A(f".amdhsa_kernel {NAME}_kernel")
    A(f"  .amdhsa_next_free_vgpr {NVGPR}")
    A("  .amdhsa_next_free_sgpr 102")
    A(f"  .amdhsa_accum_offset {(NVGPR+3)//4*4}")
    A("  .amdhsa_group_segment_fixed_size 0")
    A("  .amdhsa_kernarg_size 64")
    A("  .amdhsa_user_sgpr_count 2")
    A("  .amdhsa_user_sgpr_kernarg_segment_ptr 1")
    A("  .amdhsa_system_sgpr_workgroup_id_x 1")
    A("  .amdhsa_float_denorm_mode_32 3")
    A(".end_amdhsa_kernel")
    return "\n".join(o) + "\n"


if __name__ == "__main__":
    ap = argparse.ArgumentParser()
    ap.add_argument("-o", default="cdna_kernels/" + NAME + ".s")
    ap.add_argument("--S", type=int, default=8)
    ap.add_argument("--NW", type=int, default=8)
    ap.add_argument("--nt", default="")
    ap.add_argument("--smajor", action="store_true")
    ap.add_argument("--stamps", action="store_true")
    ap.add_argument("--pin", type=int, default=0)
    a = ap.parse_args()
    open(a.o, "w").write(gen(a.S, a.NW, a.nt, not a.smajor, a.stamps, a.pin))
```

```python
import sys, argparse
from gen import HEADER, NAME


def bitrev4(n):
    return ((n & 1) << 3) | ((n & 2) << 1) | ((n & 4) >> 1) | ((n & 8) >> 3)


def gen(nt="nt", stamps=False, NP=1, sleep=0, vfirst=6, kbar=True, exp=''):
    S = 16; NW = 8; NL = 16; NWG = 256
    LDS_ACC = 0
    LDS_MAX = NW * 1024
    LDS_L = LDS_MAX + 128
    LDS_BYTES = LDS_L + 128
    ML_OFF = 0x40000
    KB = 64; VB = 128
    OFFB = 28
    NVGPR = 192
    ntf = (" " + nt.replace("_", " ")) if nt else ""
    DPP = "row_mask:0xf bank_mask:0xf"
    o = []
    A = o.append

    def stamp(k):
        if stamps:
            A(f"  s_memrealtime s[{80+2*k}:{81+2*k}]")

    def write_stamps(n=10):
        A("  s_memrealtime s[96:97]")
        A("  s_waitcnt lgkmcnt(0)")
        A("  s_lshl_b32 s36, s2, 6")
        A(f"  s_add_u32 s36, s36, {128<<20}")
        A("  v_mov_b32 v7, s36")
        for k in range(n):
            A(f"  v_mov_b32 v8, s{80+2*k}")
            A(f"  global_store_dword v7, v8, s[18:19] offset:{4*k}")

    A(HEADER.rstrip("\n"))
    A(f"; @launch grid=({NWG},1,1) block=({64*NW},1,1) lds={LDS_BYTES}")
    A('.amdgcn_target "amdgcn-amd-amdhsa--gfx950"')
    A(".text")
    A(f".globl {NAME}_kernel")
    A(".p2align 8")
    A(f".type {NAME}_kernel,@function")
    A(f"{NAME}_kernel:")
    A(f"  s_cmp_ge_u32 s2, {NWG}")
    A("  s_cbranch_scc1 L_end")
    A("  s_load_dwordx16 s[4:19], s[0:1], 0")
    stamp(0)
    A("  v_lshrrev_b32 v7, 6, v0")
    A("  v_and_b32 v2, 15, v0                ; c")
    A("  v_readfirstlane_b32 s30, v7         ; w")
    A("  v_bfe_u32 v3, v0, 4, 2")
    A("  v_and_b32 v1, 63, v0                ; lane")
    A("  s_lshr_b32 s28, s2, 4")
    A("  s_and_b32 s29, s2, 15               ; split")
    A("  s_lshl_b32 s36, s29, 2")
    A("  v_lshlrev_b32 v18, 6, v2")
    A("  v_add_u32 v18, s36, v18")
    A("  s_lshl_b32 s36, s28, 9")
    A("  v_and_b32 v19, 31, v0")
    A("  v_lshlrev_b32 v19, 4, v19")
    A("  v_add_u32 v19, s36, v19")
    A("  v_lshrrev_b32 v7, 5, v0")
    A("  v_lshlrev_b32 v5, 13, v7")
    A("  v_add_u32 v5, v5, v19")
    A("  s_lshl_b32 s36, s29, 4")
    A("  v_lshl_add_u32 v4, v2, 8, v7")
    A("  v_add_u32 v4, s36, v4")
    A("  v_mov_b32 v62, 0x40000000")
    A("  s_lshl_b32 s36, s2, 10")
    A("  v_lshlrev_b32 v61, 4, v1            ; lane*16")
    A("  v_add_u32 v56, s36, v61")
    A("  s_lshl_b32 s37, s2, 4")
    A(f"  s_add_u32 s37, s37, {ML_OFF}")
    A("  v_mov_b32 v57, s37")
    for k in range(4):
        A(f"  v_mov_b32 v{20+k}, -1")
    A("  s_waitcnt lgkmcnt(0)")
    A("  s_load_dword s32, s[12:13], 0       ; context_len")
    A("  global_load_dword v6, v18, s[10:11]")
    A("  global_load_dwordx4 v[8:11], v19, s[4:5]")
    A("  s_cmp_lg_u32 s30, 7")
    A("  s_cbranch_scc1 L_noclear")
    A("  global_store_dwordx4 v56, v[20:23], s[18:19] sc1")
    A("  global_store_dwordx4 v57, v[20:23], s[18:19] sc1")
    A("L_noclear:")
    A("  s_mov_b32 s20, s6")
    A("  s_and_b32 s21, s7, 0xffff")
    A("  s_mov_b32 s22, 34078720")
    A("  s_mov_b32 s23, 0x00020000")
    A("  s_mov_b32 s24, s8")
    A("  s_and_b32 s25, s9, 0xffff")
    A("  s_mov_b32 s26, 34078720")
    A("  s_mov_b32 s27, 0x00020000")
    A("  s_mov_b32 s35, 0x3e0293ee           ; log2(e)/sqrt(128)")
    A("  v_and_b32 v7, 1, v2")
    A("  v_mov_b32 v60, 0xffff")
    A("  v_lshlrev_b32 v63, 4, v7")
    A("  v_lshlrev_b32 v60, v63, v60")
    A("  v_cmp_eq_u32_e64 s[42:43], 1, v7")
    A("  v_and_b32 v16, 1, v3")
    A("  v_lshrrev_b32 v7, 3, v2")
    A("  v_cmp_eq_u32 vcc, v7, v16")
    A("  v_and_b32 v7, 2, v2")
    A("  v_cmp_eq_u32_e64 s[40:41], 2, v7")
    A("  v_cndmask_b32 v60, 0, v60, vcc")
    A("  v_lshlrev_b32 v57, 3, v16")
    A("  v_add_u32 v57, s37, v57")
    A("  v_cndmask_b32_e64 v12, v60, 0, s[40:41]")
    A("  v_cndmask_b32_e64 v13, 0, v60, s[40:41]")
    A("  v_lshlrev_b32 v16, 6, v16")
    A("  v_lshrrev_b32 v7, 5, v0")
    A("  v_lshl_add_u32 v63, v7, 2, v16")
    A("  s_lshl_b32 s36, s30, 10")
    A("  v_add_u32 v60, s36, v61             ; w*1024+lane*16")
    A("  s_lshl_b32 s36, s28, 4")
    if "atomic" in exp:
        A("  v_mov_b32 v58, s36")
    else:
        A("  v_and_b32 v58, 3, v0")
        A("  v_lshl_add_u32 v58, v58, 2, s36")
    A("  v_mov_b32 v59, 1")
    A("  v_mov_b32 v55, s2")
    A("  s_waitcnt vmcnt(0) lgkmcnt(0)")
    A("  s_cmp_lg_u32 s30, 7")
    A("  s_cbranch_scc1 L_noflag")
    A("  s_mov_b64 exec, 1")
    if "atomic" in exp:
        A("  global_atomic_add v58, v59, s[16:17] sc1")
    else:
        A("  global_store_byte v55, v59, s[16:17] sc1")
    A("  s_mov_b64 exec, -1")
    A("L_noflag:")
    stamp(2)
    A("  s_cmp_lt_i32 s32, 1")
    A("  s_cselect_b32 s33, 4096, s32")
    A("  s_cselect_b32 s34, 0, 0xf149f2ca")
    A("  s_min_u32 s33, s33, 4096            ; N_eff")
    A("  v_lshlrev_b32 v6, 17, v6")
    A("  v_cmp_gt_u32 vcc, s33, v4")
    A("  v_cmp_gt_i32_e64 s[44:45], s32, v4")
    A("  v_mov_b32 v17, s34                  ; fill")
    A("  v_cndmask_b32 v6, v62, v6, vcc")
    A("  s_nop 1")
    for n in range(NL):
        A(f"  v_add_u32_dpp v{OFFB+n}, v6, v5 row_newbcast:{bitrev4(n)} {DPP}")
        A(f"  buffer_load_dwordx4 v[{KB+4*n}:{KB+4*n+3}], v{OFFB+n}, s[20:23], 0 offen{ntf}")
    issued = 0
    def issue_v(upto):
        nonlocal issued
        while issued < upto:
            i = issued
            A(f"  buffer_load_dwordx4 v[{VB+4*i}:{VB+4*i+3}], v{OFFB+i}, s[24:27], 0 offen{ntf}")
            issued += 1
    if kbar:
        A("  s_barrier")
    assert vfirst <= 12
    issue_v(vfirst)
    for g in range(4):
        n = (NL - 4 * g - 4) + issued
        A(f"  s_waitcnt vmcnt({n})")
        for j in range(4):
            for a in range(4):
                i = 4 * g + a
                c = "0" if j == 0 else f"v{44+a}"
                A(f"  v_dot2_f32_bf16 v{44+a}, v{KB+4*i+j}, v{8+j}, {c}")
        A("  v_add_f32_dpp v48, v44, v44 row_ror:8 row_mask:0xf bank_mask:0x3")
        A("  v_add_f32_dpp v48, v45, v45 row_ror:8 row_mask:0xf bank_mask:0xc")
        A("  v_add_f32_dpp v49, v46, v46 row_ror:8 row_mask:0xf bank_mask:0x3")
        A("  v_add_f32_dpp v49, v47, v47 row_ror:8 row_mask:0xf bank_mask:0xc")
        A(f"  v_add_f32_dpp v{50+g}, v48, v48 row_ror:12 row_mask:0xf bank_mask:0x5")
        A("  s_nop 0")
        A(f"  v_add_f32_dpp v{50+g}, v49, v49 row_ror:4 row_mask:0xf bank_mask:0xa")
        if g in (1, 3):
            a, b = 50 + g - 1, 50 + g
            A(f"  v_cndmask_b32_e64 v54, v{b}, v{a}, s[40:41]")
            A(f"  v_cndmask_b32_e64 v{a}, v{a}, v{b}, s[40:41]")
            A("  s_nop 0")
            A(f"  v_add_f32_dpp v{a}, v54, v{a} quad_perm:[2,3,0,1] {DPP}")
    A("  v_cndmask_b32_e64 v54, v52, v50, s[42:43]")
    A("  v_cndmask_b32_e64 v50, v50, v52, s[42:43]")
    A("  s_nop 0")
    A(f"  v_add_f32_dpp v50, v54, v50 quad_perm:[1,0,3,2] {DPP}")
    A("  v_mul_f32 v50, s35, v50")
    A("  v_cndmask_b32_e64 v50, v17, v50, s[44:45]")
    A("  s_nop 1")
    A(f"  v_max_f32_dpp v7, v50, v50 row_ror:8 {DPP}")
    for sh in (4, 2, 1):
        A("  s_nop 1")
        A(f"  v_max_f32_dpp v7, v7, v7 row_ror:{sh} {DPP}")
    stamp(4)
    A(f"  ds_write_b32 v63, v7 offset:{LDS_MAX}")
    A("  s_waitcnt lgkmcnt(0)")
    A("  s_barrier")
    stamp(3)
    for k in range(4):
        A(f"  ds_read_b128 v[{KB+4*k}:{KB+4*k+3}], v16 offset:{LDS_MAX+16*k}")
    for k in range(4):
        A(f"  s_waitcnt lgkmcnt({3-k})")
        A(f"  v_max3_f32 v7, v7, v{KB+4*k}, v{KB+1+4*k}")
        A(f"  v_max3_f32 v7, v7, v{KB+4*k+2}, v{KB+3+4*k}")
    A("  v_sub_f32 v50, v50, v7")
    A("  v_exp_f32 v50, v50")
    A("  s_nop 0")
    A("  v_cvt_pk_bf16_f32 v14, v50, v50     ; PH")
    A(f"  v_add_f32_dpp v19, v50, v50 row_ror:8 {DPP}")
    A("  v_and_b32 v15, 0xffff0000, v14")
    A("  v_sub_f32 v15, v50, v15")
    A(f"  v_add_f32_dpp v19, v19, v19 row_ror:4 {DPP}")
    A("  v_cvt_pk_bf16_f32 v15, v15, v15     ; PL")
    A("  s_nop 0")
    A(f"  v_add_f32_dpp v19, v19, v19 row_ror:2 {DPP}")
    A("  s_nop 1")
    A(f"  v_add_f32_dpp v19, v19, v19 row_ror:1 {DPP}")
    A(f"  ds_write_b32 v63, v19 offset:{LDS_L}")
    A("  s_waitcnt lgkmcnt(0)")
    A("  s_barrier")
    stamp(1)
    A("  s_cmp_lg_u32 s30, 0")
    A("  s_cbranch_scc1 L_noml")
    for k in range(4):
        A(f"  ds_read_b128 v[{KB+4*k}:{KB+3+4*k}], v16 offset:{LDS_L+16*k}")
    A("  s_waitcnt lgkmcnt(0)")
    for k in range(4):
        A(f"  v_pk_add_f32 v[{KB+4*k}:{KB+4*k+1}], v[{KB+4*k}:{KB+4*k+1}], v[{KB+4*k+2}:{KB+4*k+3}]")
    A(f"  v_pk_add_f32 v[{KB}:{KB+1}], v[{KB}:{KB+1}], v[{KB+4}:{KB+5}]")
    A(f"  v_pk_add_f32 v[{KB+8}:{KB+9}], v[{KB+8}:{KB+9}], v[{KB+12}:{KB+13}]")
    A(f"  v_pk_add_f32 v[{KB}:{KB+1}], v[{KB}:{KB+1}], v[{KB+8}:{KB+9}]")
    A(f"  v_add_f32 v9, v{KB}, v{KB+1}")
    A("  v_min_u32 v8, -2, v7")
    A("  v_min_u32 v9, -2, v9")
    A("  global_store_dwordx2 v57, v[8:9], s[18:19] sc1")
    A("L_noml:")
    issue_v(12)
    A("  s_cmp_lg_u32 s30, 1")
    A("  s_cbranch_scc1 L_nocnt")
    if "nocnt" in exp:
        A("  global_load_dword v18, v57, s[18:19] sc1   ; dummy")
    else:
        A("  global_load_dword v18, v58, s[16:17] sc1")
    A("L_nocnt:")
    issue_v(NL)
    A("  s_cmp_gt_u32 s30, 1")
    A("  s_cbranch_scc1 L_pv")
    A("  s_cmp_eq_u32 s30, 1")
    A("  s_cbranch_scc1 L_w1")
    A("  s_lshl_b32 s36, s2, 10")
    A("  v_lshrrev_b32 v7, 1, v3             ; l>>5")
    A("  v_lshlrev_b32 v56, 9, v7")
    A("  v_lshl_add_u32 v56, v2, 5, v56")
    A("  v_and_b32 v7, 1, v3")
    A("  v_lshl_add_u32 v56, v7, 4, v56")
    A("  v_add_u32 v56, s36, v56")
    A("  s_branch L_pv")
    A("L_w1:")
    A("  s_lshl_b32 s36, s28, 14")
    A("  s_lshl_b32 s37, s29, 6")
    A("  s_add_u32 s36, s36, s37")
    A("  v_lshlrev_b32 v56, 12, v3")
    A("  v_lshl_add_u32 v56, v2, 2, v56")
    A("  v_add_u32 v56, s36, v56")
    A("  s_lshl_b32 s36, s28, 8")
    A("  s_lshr_b32 s37, s29, 3")
    A("  s_lshl_b32 s37, s37, 3")
    A("  s_add_u32 s36, s36, s37")
    A(f"  s_add_u32 s36, s36, {ML_OFF}")
    A("  v_and_b32 v7, 3, v2")
    A("  v_lshl_add_u32 v7, v3, 2, v7")
    A("  v_lshlrev_b32 v57, 4, v7")
    A("  v_add_u32 v57, s36, v57")

    def pv(w1):
        for i in range(NL):
            n = NL - 1 - i
            if w1 and i != 12:
                n += 1
            lam = bitrev4(i)
            ab = 44 + 2 * (i % 4)
            for w in range(2):
                A(f"  v_and_b32_dpp v{ab+w}, v14, v{12+w} row_newbcast:{lam} row_mask:0xf bank_mask:0x5")
                A(f"  v_and_b32_dpp v{ab+w}, v15, v{12+w} row_newbcast:{lam} row_mask:0xf bank_mask:0xa")
            A(f"  s_waitcnt vmcnt({n})")
            A("  s_nop 0")
            c0 = "0" if i == 0 else "v[20:23]"
            c1 = "0" if i == 0 else "v[24:27]"
            A(f"  v_mfma_f32_16x16x16_bf16 v[20:23], v[{ab}:{ab+1}], v[{VB+4*i}:{VB+4*i+1}], {c0}")
            A(f"  v_mfma_f32_16x16x16_bf16 v[24:27], v[{ab}:{ab+1}], v[{VB+4*i+2}:{VB+4*i+3}], {c1}")
            if w1 and i == 12:
                A("  global_load_dwordx2 v[62:63], v57, s[18:19] sc1   ; (m,l) records")
    stamp(5)
    pv(True)
    A("  s_branch L_pvdone")
    A("L_pv:")
    pv(False)
    A("L_pvdone:")
    stamp(6)
    A("  s_nop 7")
    for k in range(4):
        A(f"  v_permlane16_swap_b32 v{20+k}, v{24+k}")
    A("  v_pk_add_f32 v[20:21], v[20:21], v[24:25]")
    A("  v_pk_add_f32 v[22:23], v[22:23], v[26:27]")
    A(f"  ds_write_b128 v60, v[20:23] offset:{LDS_ACC}")
    A("  s_waitcnt lgkmcnt(0)")
    A("  s_barrier")
    A("  s_cmp_gt_u32 s30, 1")
    A("  s_cbranch_scc1 L_end")
    A("  s_cmp_eq_u32 s30, 1")
    A("  s_cbranch_scc1 L_cons")
    for k in range(1, NW):
        A(f"  ds_read_b128 v[{KB+4*k}:{KB+4*k+3}], v61 offset:{LDS_ACC+1024*k}")
    for k in range(1, NW):
        A(f"  s_waitcnt lgkmcnt({NW-1-k})")
        A(f"  v_pk_add_f32 v[20:21], v[20:21], v[{KB+4*k}:{KB+4*k+1}]")
        A(f"  v_pk_add_f32 v[22:23], v[22:23], v[{KB+4*k+2}:{KB+4*k+3}]")
    for j in range(4):
        A(f"  v_min_u32 v{20+j}, -2, v{20+j}")
    A("  global_store_dwordx4 v56, v[20:23], s[18:19] sc1")
    A("  s_endpgm")
    A("L_cons:")
    stamp(9)

    def issue(p):
        for m in range(4):
            A(f"  global_load_dword v{64+4*p+m}, v56, s[18:19] offset:{m*1024} sc1")
    want = S if "atomic" in exp else 0x01010101
    A(f"  v_cmp_ne_u32 vcc, {want}, v18")
    A("  s_cbranch_vccz L_cok")
    A("L_cchk:")
    A("  global_load_dword v18, v58, s[16:17] sc1")
    A("  s_waitcnt vmcnt(0)")
    A(f"  v_cmp_ne_u32 vcc, {want}, v18")
    A("  s_cbranch_vccnz L_cchk")
    A("L_mlpoll:")
    A("  global_load_dwordx2 v[62:63], v57, s[18:19] sc1")
    A("L_cok:")
    A("  s_waitcnt vmcnt(0)")
    A("  v_max_u32 v7, v62, v63")
    A("  v_cmp_eq_u32 vcc, -1, v7")
    A("  s_cbranch_vccnz L_mlpoll")
    for p in range(NP):
        issue(p)
        if sleep and p != NP - 1:
            A(f"  s_sleep {sleep}")

    def allred(op, reg, tmp):
        for sh in (2, 1):
            A("  s_nop 1")
            A(f"  {op}_dpp v{reg}, v{reg}, v{reg} row_ror:{sh} {DPP}")
        A(f"  v_mov_b32 v{tmp}, v{reg}")
        A("  s_nop 1")
        A(f"  v_permlane16_swap_b32 v{reg}, v{tmp}")
        A("  s_nop 1")
        A(f"  {op} v{reg}, v{reg}, v{tmp}")
        A(f"  v_mov_b32 v{tmp}, v{reg}")
        A("  s_nop 1")
        A(f"  v_permlane32_swap_b32 v{reg}, v{tmp}")
        A("  s_nop 1")
        A(f"  {op} v{reg}, v{reg}, v{tmp}")
    A("  v_mov_b32 v7, v62")
    allred("v_max_f32", 7, 8)
    A("  v_sub_f32 v62, v62, v7")
    A("  v_exp_f32 v62, v62")
    A("  s_nop 0")
    A("  v_mul_f32 v63, v62, v63")
    allred("v_add_f32", 63, 8)
    A("  v_rcp_f32 v63, v63")
    A("  s_lshl_b32 s36, s28, 9")
    A("  s_lshl_b32 s37, s29, 5")
    A("  s_add_u32 s36, s36, s37")
    A("  v_mul_f32 v62, v62, v63")
    A("  v_lshlrev_b32 v9, 1, v2")
    A("  v_add_u32 v9, s36, v9")
    A("L_poll:")
    for p in range(NP):
        A(f"  s_waitcnt vmcnt({4*(NP-1)})")
        b = 64 + 4 * p
        A(f"  v_max3_u32 v7, v{b}, v{b+1}, v{b+2}")
        A(f"  v_max_u32 v7, v7, v{b+3}")
        A("  v_cmp_eq_u32 vcc, -1, v7")
        A(f"  s_cbranch_vccz L_done{p}")
        issue(p)
    A("  s_branch L_poll")
    for p in range(NP):
        b = 64 + 4 * p
        A(f"L_done{p}:")
        A(f"  v_mul_f32_dpp v20, v62, v{b} row_newbcast:0 {DPP}")
        for m in range(1, 4):
            A(f"  v_fmac_f32_dpp v20, v62, v{b+m} row_newbcast:{m} {DPP}")
        if p != NP - 1:
            A("  s_branch L_fin")
    A("L_fin:")
    stamp(7)
    A("  v_mov_b32 v21, v20")
    A("  s_nop 1")
    A("  v_permlane16_swap_b32 v20, v21")
    A("  s_nop 1")
    A("  v_add_f32 v20, v20, v21")
    A("  v_mov_b32 v21, v20")
    A("  s_nop 1")
    A("  v_permlane32_swap_b32 v20, v21")
    A("  s_nop 1")
    A("  v_add_f32 v20, v20, v21")
    A("  v_cvt_pk_bf16_f32 v20, v20, v20")
    A("  s_mov_b64 exec, 0xffff")
    A("  global_store_short v9, v20, s[14:15]")
    if stamps:
        write_stamps()
    A("L_end:")
    A("  s_endpgm")
    A('.section .rodata,"a"')
    A(".p2align 6")
    A(f".amdhsa_kernel {NAME}_kernel")
    A(f"  .amdhsa_next_free_vgpr {NVGPR}")
    A("  .amdhsa_next_free_sgpr 102")
    A(f"  .amdhsa_accum_offset {(NVGPR+3)//4*4}")
    A("  .amdhsa_group_segment_fixed_size 0")
    A("  .amdhsa_kernarg_size 64")
    A("  .amdhsa_user_sgpr_count 2")
    A("  .amdhsa_user_sgpr_kernarg_segment_ptr 1")
    A("  .amdhsa_system_sgpr_workgroup_id_x 1")
    A("  .amdhsa_float_denorm_mode_32 3")
    A(".end_amdhsa_kernel")
    return "\n".join(o) + "\n"


if __name__ == "__main__":
    ap = argparse.ArgumentParser()
    ap.add_argument("-o", default="cdna_kernels/" + NAME + ".s")
    ap.add_argument("--nt", default="nt")
    ap.add_argument("--stamps", action="store_true")
    ap.add_argument("--NP", type=int, default=1)
    ap.add_argument("--sleep", type=int, default=0)
    ap.add_argument("--vfirst", type=int, default=6)
    ap.add_argument("--nokbar", action="store_true")
    ap.add_argument("--exp", default="")
    a = ap.parse_args()
    open(a.o, "w").write(gen(a.nt, a.stamps, a.NP, a.sleep, a.vfirst, not a.nokbar, a.exp))
```

```python
import sys, argparse
from gen import HEADER, NAME


def bitrev4(n):
    return ((n & 1) << 3) | ((n & 2) << 1) | ((n & 4) >> 1) | ((n & 8) >> 3)


def gen(nt="nt", stamps=False, NP=1, sleep=0, vfirst=6, kbar=True, exp='', PF=0, PFV=0):
    exp = exp + ',atomic'
    S = 16; NW = 8; NL = 16; NWG = 256
    LDS_ACC = 0
    LDS_MAX = NW * 1024
    LDS_L = LDS_MAX + 128
    LDS_BYTES = LDS_L + 128
    ML_OFF = 0x40000
    FAST_OFF = 0x80000
    KB = 64; VB = 128
    OFFB = 28
    NVGPR = 192
    ntf = (" " + nt.replace("_", " ")) if nt else ""
    DPP = "row_mask:0xf bank_mask:0xf"
    o = []
    A = o.append

    def stamp(k):
        if stamps:
            A(f"  s_memrealtime s[{80+2*k}:{81+2*k}]")

    def write_stamps(n=10):
        A("  s_memrealtime s[96:97]")
        A("  s_waitcnt lgkmcnt(0)")
        A("  s_lshl_b32 s36, s2, 6")
        A(f"  s_add_u32 s36, s36, {128<<20}")
        A("  v_mov_b32 v7, s36")
        for k in range(n):
            A(f"  v_mov_b32 v8, s{80+2*k}")
            A(f"  global_store_dword v7, v8, s[18:19] offset:{4*k}")

    A(HEADER.rstrip("\n"))
    A(f"; @launch grid=({NWG},1,1) block=({64*NW},1,1) lds={LDS_BYTES}")
    A('.amdgcn_target "amdgcn-amd-amdhsa--gfx950"')
    A(".text")
    A(f".globl {NAME}_kernel")
    A(".p2align 8")
    A(f".type {NAME}_kernel,@function")
    A(f"{NAME}_kernel:")
    A(f"  s_cmp_ge_u32 s2, {NWG}")
    A("  s_cbranch_scc1 L_end")
    A("  s_load_dwordx16 s[4:19], s[0:1], 0")
    stamp(0)
    A("  v_lshrrev_b32 v7, 6, v0")
    A("  v_and_b32 v2, 15, v0                ; c")
    A("  v_readfirstlane_b32 s30, v7         ; w")
    A("  v_bfe_u32 v3, v0, 4, 2")
    A("  v_and_b32 v1, 63, v0                ; lane")
    if "hmajor" in exp:
        A("  s_lshr_b32 s28, s2, 4")
        A("  s_and_b32 s29, s2, 15               ; split")
    else:
        A("  s_and_b32 s28, s2, 15")
        A("  s_lshr_b32 s29, s2, 4               ; split")
    A("  s_lshl_b32 s31, s28, 4")
    A("  s_add_u32 s31, s31, s29")
    A("  s_getreg_b32 s38, hwreg(HW_REG_XCC_ID)")
    A("  s_and_b32 s38, s38, 15")
    A("  s_lshl_b32 s36, s29, 2")
    A("  v_lshlrev_b32 v18, 6, v2")
    A("  v_add_u32 v18, s36, v18")
    A("  s_lshl_b32 s36, s28, 9")
    A("  v_and_b32 v19, 31, v0")
    A("  v_lshlrev_b32 v19, 4, v19")
    A("  v_add_u32 v19, s36, v19")
    A("  v_lshrrev_b32 v7, 5, v0")
    A("  v_lshlrev_b32 v5, 13, v7")
    A("  v_add_u32 v5, v5, v19")
    A("  s_lshl_b32 s36, s29, 4")
    A("  v_lshl_add_u32 v4, v2, 8, v7")
    A("  v_add_u32 v4, s36, v4")
    A("  v_mov_b32 v62, 0x40000000")
    A("  s_lshl_b32 s36, s31, 10")
    A("  v_lshlrev_b32 v61, 4, v1            ; lane*16")
    A("  v_add_u32 v56, s36, v61")
    A(f"  v_add_u32 v55, {FAST_OFF}, v56")
    A("  s_lshl_b32 s37, s31, 5")
    A(f"  s_add_u32 s37, s37, {ML_OFF}")
    A("  v_and_b32 v16, 1, v3")
    A("  v_lshl_add_u32 v57, v16, 4, s37")
    for k in range(4):
        A(f"  v_mov_b32 v{20+k}, -1")
    A("  s_waitcnt lgkmcnt(0)")
    A("  s_load_dword s32, s[12:13], 0       ; context_len")
    A("  global_load_dword v6, v18, s[10:11]")
    A("  global_load_dwordx4 v[8:11], v19, s[4:5]")
    if PF or PFV:
        A("  s_lshl_b32 s36, s29, 17")
        A("  v_add_u32 v7, s36, v5")
        for k in range(PF):
            if k:
                A(f"  v_add_u32 v7, {16<<17}, v7")
            A(f"  global_load_dwordx4 v[{VB+4*k}:{VB+4*k+3}], v7, s[6:7]")
            if k < PFV:
                A(f"  global_load_dwordx4 v[{VB+32+4*k}:{VB+32+4*k+3}], v7, s[8:9]")
    A("  s_cmp_lg_u32 s30, 7")
    A("  s_cbranch_scc1 L_noclear")
    A("  global_store_dwordx4 v56, v[20:23], s[18:19] sc1")
    A("  global_store_dwordx4 v57, v[20:23], s[18:19] sc1")
    A("  global_store_dwordx4 v55, v[20:23], s[18:19]")
    A("L_noclear:")
    A("  s_mov_b32 s20, s6")
    A("  s_and_b32 s21, s7, 0xffff")
    A("  s_mov_b32 s22, 34078720")
    A("  s_mov_b32 s23, 0x00020000")
    A("  s_mov_b32 s24, s8")
    A("  s_and_b32 s25, s9, 0xffff")
    A("  s_mov_b32 s26, 34078720")
    A("  s_mov_b32 s27, 0x00020000")
    A("  s_mov_b32 s35, 0x3e0293ee           ; log2(e)/sqrt(128)")
    A("  v_and_b32 v7, 1, v2")
    A("  v_mov_b32 v60, 0xffff")
    A("  v_lshlrev_b32 v63, 4, v7")
    A("  v_lshlrev_b32 v60, v63, v60")
    A("  v_cmp_eq_u32_e64 s[42:43], 1, v7")
    A("  v_lshrrev_b32 v7, 3, v2")
    A("  v_cmp_eq_u32 vcc, v7, v16")
    A("  v_and_b32 v7, 2, v2")
    A("  v_cmp_eq_u32_e64 s[40:41], 2, v7")
    A("  v_cndmask_b32 v60, 0, v60, vcc")
    A("  s_nop 1")
    A("  v_cndmask_b32_e64 v12, v60, 0, s[40:41]")
    A("  v_cndmask_b32_e64 v13, 0, v60, s[40:41]")
    A("  v_lshlrev_b32 v16, 6, v16")
    A("  v_lshrrev_b32 v7, 5, v0")
    A("  v_lshl_add_u32 v63, v7, 2, v16")
    A("  s_lshl_b32 s36, s30, 10")
    A("  v_add_u32 v60, s36, v61             ; w*1024+lane*16")
    A("  s_lshl_b32 s36, s28, 4")
    if "atomic" in exp:
        A("  v_mov_b32 v58, s36")
    else:
        A("  v_and_b32 v58, 3, v0")
        A("  v_lshl_add_u32 v58, v58, 2, s36")
    A("  v_mov_b32 v59, 1")
    A(f"  s_waitcnt vmcnt({PF+PFV}) lgkmcnt(0)")
    A("  s_cmp_lg_u32 s30, 7")
    A("  s_cbranch_scc1 L_noflag")
    A("  s_waitcnt vmcnt(0)")
    A("  s_mov_b64 exec, 1")
    if "atomic" in exp:
        A("  global_atomic_add v58, v59, s[16:17] sc1")
    else:
        A("  global_store_byte v55, v59, s[16:17] sc1")
    A("  s_mov_b64 exec, -1")
    A("L_noflag:")
    stamp(2)
    A("  s_cmp_lt_i32 s32, 1")
    A("  s_cselect_b32 s33, 4096, s32")
    A("  s_cselect_b32 s34, 0, 0xf149f2ca")
    A("  s_min_u32 s33, s33, 4096            ; N_eff")
    A("  v_lshlrev_b32 v6, 17, v6")
    A("  v_cmp_gt_u32 vcc, s33, v4")
    A("  v_cmp_gt_i32_e64 s[44:45], s32, v4")
    A("  v_mov_b32 v17, s34                  ; fill")
    A("  v_cndmask_b32 v6, v62, v6, vcc")
    A("  s_nop 1")
    for n in range(NL):
        A(f"  v_add_u32_dpp v{OFFB+n}, v6, v5 row_newbcast:{bitrev4(n)} {DPP}")
        A(f"  buffer_load_dwordx4 v[{KB+4*n}:{KB+4*n+3}], v{OFFB+n}, s[20:23], 0 offen{ntf}")
    issued = 0
    def issue_v(upto):
        nonlocal issued
        while issued < upto:
            i = issued
            A(f"  buffer_load_dwordx4 v[{VB+4*i}:{VB+4*i+3}], v{OFFB+i}, s[24:27], 0 offen{ntf}")
            issued += 1
    if kbar:
        A("  s_barrier")
    assert vfirst <= 12
    issue_v(vfirst)
    for g in range(4):
        n = (NL - 4 * g - 4) + issued
        A(f"  s_waitcnt vmcnt({n})")
        for j in range(4):
            for a in range(4):
                i = 4 * g + a
                c = "0" if j == 0 else f"v{44+a}"
                A(f"  v_dot2_f32_bf16 v{44+a}, v{KB+4*i+j}, v{8+j}, {c}")
        A("  v_add_f32_dpp v48, v44, v44 row_ror:8 row_mask:0xf bank_mask:0x3")
        A("  v_add_f32_dpp v48, v45, v45 row_ror:8 row_mask:0xf bank_mask:0xc")
        A("  v_add_f32_dpp v49, v46, v46 row_ror:8 row_mask:0xf bank_mask:0x3")
        A("  v_add_f32_dpp v49, v47, v47 row_ror:8 row_mask:0xf bank_mask:0xc")
        A(f"  v_add_f32_dpp v{50+g}, v48, v48 row_ror:12 row_mask:0xf bank_mask:0x5")
        A("  s_nop 0")
        A(f"  v_add_f32_dpp v{50+g}, v49, v49 row_ror:4 row_mask:0xf bank_mask:0xa")
        if g in (1, 3):
            a, b = 50 + g - 1, 50 + g
            A(f"  v_cndmask_b32_e64 v54, v{b}, v{a}, s[40:41]")
            A(f"  v_cndmask_b32_e64 v{a}, v{a}, v{b}, s[40:41]")
            A("  s_nop 0")
            A(f"  v_add_f32_dpp v{a}, v54, v{a} quad_perm:[2,3,0,1] {DPP}")
    A("  v_cndmask_b32_e64 v54, v52, v50, s[42:43]")
    A("  v_cndmask_b32_e64 v50, v50, v52, s[42:43]")
    A("  s_nop 0")
    A(f"  v_add_f32_dpp v50, v54, v50 quad_perm:[1,0,3,2] {DPP}")
    A("  v_mul_f32 v50, s35, v50")
    A("  v_cndmask_b32_e64 v50, v17, v50, s[44:45]")
    A("  s_nop 1")
    A(f"  v_max_f32_dpp v7, v50, v50 row_ror:8 {DPP}")
    for sh in (4, 2, 1):
        A("  s_nop 1")
        A(f"  v_max_f32_dpp v7, v7, v7 row_ror:{sh} {DPP}")
    stamp(4)
    A(f"  ds_write_b32 v63, v7 offset:{LDS_MAX}")
    A("  s_waitcnt lgkmcnt(0)")
    A("  s_barrier")
    stamp(3)
    for k in range(4):
        A(f"  ds_read_b128 v[{KB+4*k}:{KB+4*k+3}], v16 offset:{LDS_MAX+16*k}")
    for k in range(4):
        A(f"  s_waitcnt lgkmcnt({3-k})")
        A(f"  v_max3_f32 v7, v7, v{KB+4*k}, v{KB+1+4*k}")
        A(f"  v_max3_f32 v7, v7, v{KB+4*k+2}, v{KB+3+4*k}")
    A("  v_sub_f32 v50, v50, v7")
    A("  v_exp_f32 v50, v50")
    A("  s_nop 0")
    A("  v_cvt_pk_bf16_f32 v14, v50, v50     ; PH")
    A(f"  v_add_f32_dpp v19, v50, v50 row_ror:8 {DPP}")
    A("  v_and_b32 v15, 0xffff0000, v14")
    A("  v_sub_f32 v15, v50, v15")
    A(f"  v_add_f32_dpp v19, v19, v19 row_ror:4 {DPP}")
    A("  v_cvt_pk_bf16_f32 v15, v15, v15     ; PL")
    A("  s_nop 0")
    A(f"  v_add_f32_dpp v19, v19, v19 row_ror:2 {DPP}")
    A("  s_nop 1")
    A(f"  v_add_f32_dpp v19, v19, v19 row_ror:1 {DPP}")
    A(f"  ds_write_b32 v63, v19 offset:{LDS_L}")
    A("  s_waitcnt lgkmcnt(0)")
    A("  s_barrier")
    stamp(1)
    A("  s_cmp_lg_u32 s30, 0")
    A("  s_cbranch_scc1 L_noml")
    for k in range(4):
        A(f"  ds_read_b128 v[{KB+4*k}:{KB+3+4*k}], v16 offset:{LDS_L+16*k}")
    A("  s_waitcnt lgkmcnt(0)")
    for k in range(4):
        A(f"  v_pk_add_f32 v[{KB+4*k}:{KB+4*k+1}], v[{KB+4*k}:{KB+4*k+1}], v[{KB+4*k+2}:{KB+4*k+3}]")
    A(f"  v_pk_add_f32 v[{KB}:{KB+1}], v[{KB}:{KB+1}], v[{KB+4}:{KB+5}]")
    A(f"  v_pk_add_f32 v[{KB+8}:{KB+9}], v[{KB+8}:{KB+9}], v[{KB+12}:{KB+13}]")
    A(f"  v_pk_add_f32 v[{KB}:{KB+1}], v[{KB}:{KB+1}], v[{KB+8}:{KB+9}]")
    A(f"  v_add_f32 v9, v{KB}, v{KB+1}")
    A("  v_min_u32 v8, -2, v7")
    A("  v_min_u32 v9, -2, v9")
    A("  v_mov_b32 v10, s38")
    A("  global_store_dwordx3 v57, v[8:10], s[18:19] sc1")
    A("L_noml:")
    issue_v(12)
    A("  s_cmp_lg_u32 s30, 1")
    A("  s_cbranch_scc1 L_nocnt")
    if "nocnt" in exp:
        A("  global_load_dword v18, v57, s[18:19] sc1   ; dummy")
    else:
        A("  global_load_dword v18, v58, s[16:17] sc1")
    A("L_nocnt:")
    issue_v(NL)
    A("  s_cmp_gt_u32 s30, 1")
    A("  s_cbranch_scc1 L_pv")
    A("  s_cmp_eq_u32 s30, 1")
    A("  s_cbranch_scc1 L_w1")
    A("  s_lshl_b32 s36, s31, 10")
    A("  v_lshrrev_b32 v7, 1, v3             ; l>>5")
    A("  v_lshlrev_b32 v56, 9, v7")
    A("  v_lshl_add_u32 v56, v2, 5, v56")
    A("  v_and_b32 v7, 1, v3")
    A("  v_lshl_add_u32 v56, v7, 4, v56")
    A("  v_add_u32 v56, s36, v56")
    A(f"  v_add_u32 v55, {FAST_OFF}, v56")
    A("  s_branch L_pv")
    A("L_w1:")
    A("  s_lshl_b32 s36, s28, 14")
    A("  s_lshl_b32 s37, s29, 6")
    A("  s_add_u32 s36, s36, s37")
    A("  v_lshlrev_b32 v56, 12, v3")
    A("  v_lshl_add_u32 v56, v2, 2, v56")
    A("  v_add_u32 v56, s36, v56")
    A("  s_lshl_b32 s36, s28, 9")
    A("  s_lshr_b32 s37, s29, 3")
    A("  s_lshl_b32 s37, s37, 4")
    A("  s_add_u32 s36, s36, s37")
    A(f"  s_add_u32 s36, s36, {ML_OFF}")
    A("  v_and_b32 v7, 3, v2")
    A("  v_lshl_add_u32 v7, v3, 2, v7")
    A("  v_lshlrev_b32 v57, 5, v7")
    A("  v_add_u32 v57, s36, v57")

    def pv(w1):
        for i in range(NL):
            n = NL - 1 - i
            if w1 and i != 12:
                n += 1
            lam = bitrev4(i)
            ab = 44 + 2 * (i % 4)
            for w in range(2):
                A(f"  v_and_b32_dpp v{ab+w}, v14, v{12+w} row_newbcast:{lam} row_mask:0xf bank_mask:0x5")
                A(f"  v_and_b32_dpp v{ab+w}, v15, v{12+w} row_newbcast:{lam} row_mask:0xf bank_mask:0xa")
            A(f"  s_waitcnt vmcnt({n})")
            A("  s_nop 0")
            c0 = "0" if i == 0 else "v[20:23]"
            c1 = "0" if i == 0 else "v[24:27]"
            A(f"  v_mfma_f32_16x16x16_bf16 v[20:23], v[{ab}:{ab+1}], v[{VB+4*i}:{VB+4*i+1}], {c0}")
            A(f"  v_mfma_f32_16x16x16_bf16 v[24:27], v[{ab}:{ab+1}], v[{VB+4*i+2}:{VB+4*i+3}], {c1}")
            if w1 and i == 12:
                A("  global_load_dwordx3 v[52:54], v57, s[18:19] sc1")
    stamp(5)
    pv(True)
    A("  s_branch L_pvdone")
    A("L_pv:")
    pv(False)
    A("L_pvdone:")
    stamp(6)
    A("  s_nop 7")
    for k in range(4):
        A(f"  v_permlane16_swap_b32 v{20+k}, v{24+k}")
    A("  v_pk_add_f32 v[20:21], v[20:21], v[24:25]")
    A("  v_pk_add_f32 v[22:23], v[22:23], v[26:27]")
    A(f"  ds_write_b128 v60, v[20:23] offset:{LDS_ACC}")
    A("  s_waitcnt lgkmcnt(0)")
    A("  s_barrier")
    A("  s_cmp_gt_u32 s30, 1")
    A("  s_cbranch_scc1 L_end")
    A("  s_cmp_eq_u32 s30, 1")
    A("  s_cbranch_scc1 L_cons")
    for k in range(1, NW):
        A(f"  ds_read_b128 v[{KB+4*k}:{KB+4*k+3}], v61 offset:{LDS_ACC+1024*k}")
    for k in range(1, NW):
        A(f"  s_waitcnt lgkmcnt({NW-1-k})")
        A(f"  v_pk_add_f32 v[20:21], v[20:21], v[{KB+4*k}:{KB+4*k+1}]")
        A(f"  v_pk_add_f32 v[22:23], v[22:23], v[{KB+4*k+2}:{KB+4*k+3}]")
    for j in range(4):
        A(f"  v_min_u32 v{20+j}, -2, v{20+j}")
    if "nofast" not in exp:
        A("  global_store_dwordx4 v55, v[20:23], s[18:19]")
    A("  global_store_dwordx4 v56, v[20:23], s[18:19] sc1")
    if stamps:
        A("  s_memrealtime s[96:97]")
        A("  s_waitcnt vmcnt(0)")
        A("  s_memrealtime s[98:99]")
        A("  s_waitcnt lgkmcnt(0)")
        A("  s_lshl_b32 s36, s2, 6")
        A(f"  s_add_u32 s36, s36, {128<<20}")
        A("  v_mov_b32 v7, s36")
        A("  v_mov_b32 v8, s96")
        A("  global_store_dword v7, v8, s[18:19] offset:40")
        A("  v_mov_b32 v8, s98")
        A("  global_store_dword v7, v8, s[18:19] offset:44")
    A("  s_endpgm")
    A("L_cons:")
    stamp(9)

    def issue(p):
        for m in range(4):
            A(f"  global_load_dword v{64+4*p+m}, v{44+m}, s[18:19] offset:{m*1024} sc1")
    want = S if "atomic" in exp else 0x01010101
    A(f"  v_cmp_ne_u32 vcc, {want}, v18")
    A("  s_cbranch_vccz L_cok")
    A("L_cchk:")
    A("  global_load_dword v18, v58, s[16:17] sc1")
    A("  s_waitcnt vmcnt(0)")
    A(f"  v_cmp_ne_u32 vcc, {want}, v18")
    A("  s_cbranch_vccnz L_cchk")
    A("L_mlpoll:")
    A("  global_load_dwordx3 v[52:54], v57, s[18:19] sc1")
    A("L_cok:")
    A("  s_waitcnt vmcnt(0)")
    A("  v_max3_u32 v7, v52, v53, v54")
    A("  v_cmp_eq_u32 vcc, -1, v7")
    A("  s_cbranch_vccnz L_mlpoll")
    A("  v_cmp_eq_u32 vcc, s38, v54")
    A(f"  v_mov_b32 v8, {FAST_OFF}")
    A("  v_mov_b32 v62, v52")
    A("  v_cndmask_b32 v54, 0, v8, vcc")
    A("  v_mov_b32 v63, v53")
    A("  s_nop 0")
    for m in range(4):
        A(f"  v_add_u32_dpp v{44+m}, v54, v56 row_newbcast:{m} {DPP}")
    for p in range(NP):
        issue(p)
        if sleep and p != NP - 1:
            A(f"  s_sleep {sleep}")

    def allred(op, reg, tmp):
        for sh in (2, 1):
            A("  s_nop 1")
            A(f"  {op}_dpp v{reg}, v{reg}, v{reg} row_ror:{sh} {DPP}")
        A(f"  v_mov_b32 v{tmp}, v{reg}")
        A("  s_nop 1")
        A(f"  v_permlane16_swap_b32 v{reg}, v{tmp}")
        A("  s_nop 1")
        A(f"  {op} v{reg}, v{reg}, v{tmp}")
        A(f"  v_mov_b32 v{tmp}, v{reg}")
        A("  s_nop 1")
        A(f"  v_permlane32_swap_b32 v{reg}, v{tmp}")
        A("  s_nop 1")
        A(f"  {op} v{reg}, v{reg}, v{tmp}")
    A("  v_mov_b32 v7, v62")
    allred("v_max_f32", 7, 8)
    A("  v_sub_f32 v62, v62, v7")
    A("  v_exp_f32 v62, v62")
    A("  s_nop 0")
    A("  v_mul_f32 v63, v62, v63")
    allred("v_add_f32", 63, 8)
    A("  v_rcp_f32 v63, v63")
    A("  s_lshl_b32 s36, s28, 9")
    A("  s_lshl_b32 s37, s29, 5")
    A("  s_add_u32 s36, s36, s37")
    A("  v_mul_f32 v62, v62, v63")
    A("  v_lshlrev_b32 v9, 1, v2")
    A("  v_add_u32 v9, s36, v9")
    A("L_poll:")
    for p in range(NP):
        A(f"  s_waitcnt vmcnt({4*(NP-1)})")
        b = 64 + 4 * p
        A(f"  v_max3_u32 v7, v{b}, v{b+1}, v{b+2}")
        A(f"  v_max_u32 v7, v7, v{b+3}")
        A("  v_cmp_eq_u32 vcc, -1, v7")
        A(f"  s_cbranch_vccz L_done{p}")
        issue(p)
    A("  s_branch L_poll")
    for p in range(NP):
        b = 64 + 4 * p
        A(f"L_done{p}:")
        A(f"  v_mul_f32_dpp v20, v62, v{b} row_newbcast:0 {DPP}")
        for m in range(1, 4):
            A(f"  v_fmac_f32_dpp v20, v62, v{b+m} row_newbcast:{m} {DPP}")
        if p != NP - 1:
            A("  s_branch L_fin")
    A("L_fin:")
    stamp(7)
    A("  v_mov_b32 v21, v20")
    A("  s_nop 1")
    A("  v_permlane16_swap_b32 v20, v21")
    A("  s_nop 1")
    A("  v_add_f32 v20, v20, v21")
    A("  v_mov_b32 v21, v20")
    A("  s_nop 1")
    A("  v_permlane32_swap_b32 v20, v21")
    A("  s_nop 1")
    A("  v_add_f32 v20, v20, v21")
    A("  v_cvt_pk_bf16_f32 v20, v20, v20")
    A("  s_mov_b64 exec, 0xffff")
    A("  global_store_short v9, v20, s[14:15]")
    if stamps:
        write_stamps()
    A("L_end:")
    A("  s_endpgm")
    A('.section .rodata,"a"')
    A(".p2align 6")
    A(f".amdhsa_kernel {NAME}_kernel")
    A(f"  .amdhsa_next_free_vgpr {NVGPR}")
    A("  .amdhsa_next_free_sgpr 102")
    A(f"  .amdhsa_accum_offset {(NVGPR+3)//4*4}")
    A("  .amdhsa_group_segment_fixed_size 0")
    A("  .amdhsa_kernarg_size 64")
    A("  .amdhsa_user_sgpr_count 2")
    A("  .amdhsa_user_sgpr_kernarg_segment_ptr 1")
    A("  .amdhsa_system_sgpr_workgroup_id_x 1")
    A("  .amdhsa_float_denorm_mode_32 3")
    A(".end_amdhsa_kernel")
    return "\n".join(o) + "\n"


if __name__ == "__main__":
    ap = argparse.ArgumentParser()
    ap.add_argument("-o", default="cdna_kernels/" + NAME + ".s")
    ap.add_argument("--nt", default="nt")
    ap.add_argument("--stamps", action="store_true")
    ap.add_argument("--NP", type=int, default=1)
    ap.add_argument("--sleep", type=int, default=0)
    ap.add_argument("--vfirst", type=int, default=6)
    ap.add_argument("--nokbar", action="store_true")
    ap.add_argument("--exp", default="")
    ap.add_argument("--PF", type=int, default=0)
    ap.add_argument("--PFV", type=int, default=0)
    a = ap.parse_args()
    open(a.o, "w").write(gen(a.nt, a.stamps, a.NP, a.sleep, a.vfirst, not a.nokbar, a.exp, a.PF, a.PFV))
```

```python
import sys, argparse
from gen import HEADER, NAME


def bitrev4(n):
    return ((n & 1) << 3) | ((n & 2) << 1) | ((n & 4) >> 1) | ((n & 8) >> 3)


def gen(nt="nt", stamps=False, NP=1, sleep=0, vfirst=6, kbar=True, exp='', PF=0, PFV=0):
    exp = exp + ',atomic'
    S = 16; NW = 8; NL = 16; NWG = 256
    LDS_ACC = 0
    LDS_MAX = NW * 1024
    LDS_L = LDS_MAX + 128
    LDS_BYTES = LDS_L + 128
    ML_OFF = 0x40000
    FAST_OFF = 0x80000
    KB = 64; VB = 128
    OFFB = 28
    NVGPR = 192
    ntf = (" " + nt.replace("_", " ")) if nt else ""
    DPP = "row_mask:0xf bank_mask:0xf"
    o = []
    A = o.append

    def stamp(k):
        if stamps:
            A(f"  s_memrealtime s[{80+2*k}:{81+2*k}]")

    def write_stamps(n=10):
        A("  s_memrealtime s[96:97]")
        A("  s_waitcnt lgkmcnt(0)")
        A("  s_lshl_b32 s36, s2, 6")
        A(f"  s_add_u32 s36, s36, {128<<20}")
        A("  v_mov_b32 v7, s36")
        for k in range(n):
            A(f"  v_mov_b32 v8, s{80+2*k}")
            A(f"  global_store_dword v7, v8, s[18:19] offset:{4*k}")

    A(HEADER.rstrip("\n"))
    A(f"; @launch grid=({NWG},1,1) block=({64*NW},1,1) lds={LDS_BYTES}")
    A('.amdgcn_target "amdgcn-amd-amdhsa--gfx950"')
    A(".text")
    A(f".globl {NAME}_kernel")
    A(".p2align 8")
    A(f".type {NAME}_kernel,@function")
    A(f"{NAME}_kernel:")
    A(f"  s_cmp_ge_u32 s2, {NWG}")
    A("  s_cbranch_scc1 L_end")
    A("  s_load_dwordx16 s[4:19], s[0:1], 0")
    stamp(0)
    A("  v_lshrrev_b32 v7, 6, v0")
    A("  v_and_b32 v2, 15, v0                ; c")
    A("  v_readfirstlane_b32 s30, v7         ; w")
    A("  v_bfe_u32 v3, v0, 4, 2")
    A("  v_and_b32 v1, 63, v0                ; lane")
    if "hmajor" in exp:
        A("  s_lshr_b32 s28, s2, 4")
        A("  s_and_b32 s29, s2, 15               ; split")
    elif "xmap3" in exp or "xmap4" in exp:
        A("  s_and_b32 s28, s2, 3")
        A("  s_lshl_b32 s28, s28, 2")
        A("  s_bfe_u32 s29, s2, 0x10003")
        A("  s_lshl_b32 s29, s29, 1")
        A("  s_or_b32 s28, s28, s29")
        A("  s_bfe_u32 s29, s2, 0x10002")
        if "xmap4" in exp:
            A("  s_xor_b32 s29, s29, 1")
        A("  s_or_b32 s28, s28, s29              ; hp")
        A("  s_lshr_b32 s29, s2, 4               ; split")
    elif "xmap2" in exp:
        A("  s_and_b32 s28, s2, 7")
        A("  s_lshl_b32 s28, s28, 1")
        A("  s_bfe_u32 s29, s2, 0x10003")
        A("  s_or_b32 s28, s28, s29")
        A("  s_lshr_b32 s29, s2, 4               ; split")
    else:
        A("  s_and_b32 s28, s2, 15")
        A("  s_lshr_b32 s29, s2, 4               ; split")
    A("  s_lshl_b32 s31, s28, 4")
    A("  s_add_u32 s31, s31, s29")
    A("  s_getreg_b32 s38, hwreg(HW_REG_XCC_ID)")
    A("  s_and_b32 s38, s38, 15")
    A("  s_lshl_b32 s36, s29, 2")
    A("  v_lshlrev_b32 v18, 6, v2")
    A("  v_add_u32 v18, s36, v18")
    A("  s_lshl_b32 s36, s28, 9")
    A("  v_and_b32 v19, 31, v0")
    A("  v_lshlrev_b32 v19, 4, v19")
    A("  v_add_u32 v19, s36, v19")
    A("  v_lshrrev_b32 v7, 5, v0")
    A("  v_lshlrev_b32 v5, 13, v7")
    A("  v_add_u32 v5, v5, v19")
    A("  s_lshl_b32 s36, s29, 4")
    A("  v_lshl_add_u32 v4, v2, 8, v7")
    A("  v_add_u32 v4, s36, v4")
    A("  v_mov_b32 v62, 0x40000000")
    A("  s_lshl_b32 s36, s31, 10")
    A("  v_lshlrev_b32 v61, 4, v1            ; lane*16")
    A("  v_add_u32 v56, s36, v61")
    A(f"  v_add_u32 v55, {FAST_OFF}, v56")
    A("  s_lshl_b32 s37, s31, 5")
    A(f"  s_add_u32 s37, s37, {ML_OFF}")
    A("  v_and_b32 v16, 1, v3")
    A("  v_lshl_add_u32 v57, v16, 4, s37")
    for k in range(4):
        A(f"  v_mov_b32 v{20+k}, -1")
    A("  s_waitcnt lgkmcnt(0)")
    A("  s_load_dword s32, s[12:13], 0       ; context_len")
    A("  global_load_dword v6, v18, s[10:11]")
    A("  global_load_dwordx4 v[8:11], v19, s[4:5]")
    if PF or PFV:
        A("  s_lshl_b32 s36, s29, 17")
        A("  v_add_u32 v7, s36, v5")
        for k in range(PF):
            if k:
                A(f"  v_add_u32 v7, {16<<17}, v7")
            A(f"  global_load_dwordx4 v[{VB+4*k}:{VB+4*k+3}], v7, s[6:7]")
            if k < PFV:
                A(f"  global_load_dwordx4 v[{VB+32+4*k}:{VB+32+4*k+3}], v7, s[8:9]")
    A("  s_cmp_lg_u32 s30, 7")
    A("  s_cbranch_scc1 L_noclear")
    A("  global_store_dwordx4 v56, v[20:23], s[18:19] sc1")
    A("  global_store_dwordx4 v57, v[20:23], s[18:19] sc1")
    A("  global_store_dwordx4 v55, v[20:23], s[18:19]")
    A("L_noclear:")
    A("  s_mov_b32 s20, s6")
    A("  s_and_b32 s21, s7, 0xffff")
    A("  s_mov_b32 s22, 34078720")
    A("  s_mov_b32 s23, 0x00020000")
    A("  s_mov_b32 s24, s8")
    A("  s_and_b32 s25, s9, 0xffff")
    A("  s_mov_b32 s26, 34078720")
    A("  s_mov_b32 s27, 0x00020000")
    A("  s_mov_b32 s35, 0x3e0293ee           ; log2(e)/sqrt(128)")
    A("  v_and_b32 v7, 1, v2")
    A("  v_mov_b32 v60, 0xffff")
    A("  v_lshlrev_b32 v63, 4, v7")
    A("  v_lshlrev_b32 v60, v63, v60")
    A("  v_cmp_eq_u32_e64 s[42:43], 1, v7")
    A("  v_lshrrev_b32 v7, 3, v2")
    A("  v_cmp_eq_u32 vcc, v7, v16")
    A("  v_and_b32 v7, 2, v2")
    A("  v_cmp_eq_u32_e64 s[40:41], 2, v7")
    A("  v_cndmask_b32 v60, 0, v60, vcc")
    A("  s_nop 1")
    A("  v_cndmask_b32_e64 v12, v60, 0, s[40:41]")
    A("  v_cndmask_b32_e64 v13, 0, v60, s[40:41]")
    A("  v_lshlrev_b32 v16, 6, v16")
    A("  v_lshrrev_b32 v7, 5, v0")
    A("  v_lshl_add_u32 v63, v7, 2, v16")
    A("  s_lshl_b32 s36, s30, 10")
    A("  v_add_u32 v60, s36, v61             ; w*1024+lane*16")
    A("  s_lshl_b32 s36, s28, 4")
    if "atomic" in exp:
        A("  v_mov_b32 v58, s36")
    else:
        A("  v_and_b32 v58, 3, v0")
        A("  v_lshl_add_u32 v58, v58, 2, s36")
    A("  v_mov_b32 v59, 1")
    A(f"  s_waitcnt vmcnt({PF+PFV}) lgkmcnt(0)")
    A("  s_cmp_lg_u32 s30, 7")
    A("  s_cbranch_scc1 L_noflag")
    A("  s_waitcnt vmcnt(0)")
    A("  s_mov_b64 exec, 1")
    if "atomic" in exp:
        A("  global_atomic_add v58, v59, s[16:17] sc1")
    else:
        A("  global_store_byte v55, v59, s[16:17] sc1")
    A("  s_mov_b64 exec, -1")
    A("L_noflag:")
    stamp(2)
    A("  s_cmp_lt_i32 s32, 1")
    A("  s_cselect_b32 s33, 4096, s32")
    A("  s_cselect_b32 s34, 0, 0xf149f2ca")
    A("  s_min_u32 s33, s33, 4096            ; N_eff")
    A("  v_lshlrev_b32 v6, 17, v6")
    A("  v_cmp_gt_u32 vcc, s33, v4")
    A("  v_cmp_gt_i32_e64 s[44:45], s32, v4")
    A("  v_mov_b32 v17, s34                  ; fill")
    A("  v_cndmask_b32 v6, v62, v6, vcc")
    A("  s_nop 1")
    for n in range(NL):
        A(f"  v_add_u32_dpp v{OFFB+n}, v6, v5 row_newbcast:{bitrev4(n)} {DPP}")
        A(f"  buffer_load_dwordx4 v[{KB+4*n}:{KB+4*n+3}], v{OFFB+n}, s[20:23], 0 offen{ntf}")
    issued = 0
    def issue_v(upto):
        nonlocal issued
        while issued < upto:
            i = issued
            A(f"  buffer_load_dwordx4 v[{VB+4*i}:{VB+4*i+3}], v{OFFB+i}, s[24:27], 0 offen{ntf}")
            issued += 1
    if kbar:
        A("  s_barrier")
    assert vfirst <= 12
    issue_v(vfirst)
    for g in range(4):
        n = (NL - 4 * g - 4) + issued
        A(f"  s_waitcnt vmcnt({n})")
        for j in range(4):
            for a in range(4):
                i = 4 * g + a
                c = "0" if j == 0 else f"v{44+a}"
                A(f"  v_dot2_f32_bf16 v{44+a}, v{KB+4*i+j}, v{8+j}, {c}")
        A("  v_add_f32_dpp v48, v44, v44 row_ror:8 row_mask:0xf bank_mask:0x3")
        A("  v_add_f32_dpp v48, v45, v45 row_ror:8 row_mask:0xf bank_mask:0xc")
        A("  v_add_f32_dpp v49, v46, v46 row_ror:8 row_mask:0xf bank_mask:0x3")
        A("  v_add_f32_dpp v49, v47, v47 row_ror:8 row_mask:0xf bank_mask:0xc")
        A(f"  v_add_f32_dpp v{50+g}, v48, v48 row_ror:12 row_mask:0xf bank_mask:0x5")
        A("  s_nop 0")
        A(f"  v_add_f32_dpp v{50+g}, v49, v49 row_ror:4 row_mask:0xf bank_mask:0xa")
        if g in (1, 3):
            a, b = 50 + g - 1, 50 + g
            A(f"  v_cndmask_b32_e64 v54, v{b}, v{a}, s[40:41]")
            A(f"  v_cndmask_b32_e64 v{a}, v{a}, v{b}, s[40:41]")
            A("  s_nop 0")
            A(f"  v_add_f32_dpp v{a}, v54, v{a} quad_perm:[2,3,0,1] {DPP}")
    A("  v_cndmask_b32_e64 v54, v52, v50, s[42:43]")
    A("  v_cndmask_b32_e64 v50, v50, v52, s[42:43]")
    A("  s_nop 0")
    A(f"  v_add_f32_dpp v50, v54, v50 quad_perm:[1,0,3,2] {DPP}")
    A("  v_mul_f32 v50, s35, v50")
    A("  v_cndmask_b32_e64 v50, v17, v50, s[44:45]")
    A("  s_nop 1")
    A(f"  v_max_f32_dpp v7, v50, v50 row_ror:8 {DPP}")
    for sh in (4, 2, 1):
        A("  s_nop 1")
        A(f"  v_max_f32_dpp v7, v7, v7 row_ror:{sh} {DPP}")
    stamp(4)
    A(f"  ds_write_b32 v63, v7 offset:{LDS_MAX}")
    A("  s_waitcnt lgkmcnt(0)")
    A("  s_barrier")
    stamp(3)
    for k in range(4):
        A(f"  ds_read_b128 v[{KB+4*k}:{KB+4*k+3}], v16 offset:{LDS_MAX+16*k}")
    for k in range(4):
        A(f"  s_waitcnt lgkmcnt({3-k})")
        A(f"  v_max3_f32 v7, v7, v{KB+4*k}, v{KB+1+4*k}")
        A(f"  v_max3_f32 v7, v7, v{KB+4*k+2}, v{KB+3+4*k}")
    A("  v_sub_f32 v50, v50, v7")
    A("  v_exp_f32 v50, v50")
    A("  s_nop 0")
    A("  v_cvt_pk_bf16_f32 v14, v50, v50     ; PH")
    A(f"  v_add_f32_dpp v19, v50, v50 row_ror:8 {DPP}")
    A("  v_and_b32 v15, 0xffff0000, v14")
    A("  v_sub_f32 v15, v50, v15")
    A(f"  v_add_f32_dpp v19, v19, v19 row_ror:4 {DPP}")
    A("  v_cvt_pk_bf16_f32 v15, v15, v15     ; PL")
    A("  s_nop 0")
    A(f"  v_add_f32_dpp v19, v19, v19 row_ror:2 {DPP}")
    A("  s_nop 1")
    A(f"  v_add_f32_dpp v19, v19, v19 row_ror:1 {DPP}")
    A(f"  ds_write_b32 v63, v19 offset:{LDS_L}")
    A("  s_waitcnt lgkmcnt(0)")
    A("  s_barrier")
    stamp(1)
    A("  s_cmp_lg_u32 s30, 0")
    A("  s_cbranch_scc1 L_noml")
    for k in range(4):
        A(f"  ds_read_b128 v[{KB+4*k}:{KB+3+4*k}], v16 offset:{LDS_L+16*k}")
    A("  s_waitcnt lgkmcnt(0)")
    for k in range(4):
        A(f"  v_pk_add_f32 v[{KB+4*k}:{KB+4*k+1}], v[{KB+4*k}:{KB+4*k+1}], v[{KB+4*k+2}:{KB+4*k+3}]")
    A(f"  v_pk_add_f32 v[{KB}:{KB+1}], v[{KB}:{KB+1}], v[{KB+4}:{KB+5}]")
    A(f"  v_pk_add_f32 v[{KB+8}:{KB+9}], v[{KB+8}:{KB+9}], v[{KB+12}:{KB+13}]")
    A(f"  v_pk_add_f32 v[{KB}:{KB+1}], v[{KB}:{KB+1}], v[{KB+8}:{KB+9}]")
    A(f"  v_add_f32 v9, v{KB}, v{KB+1}")
    A("  v_min_u32 v8, -2, v7")
    A("  v_min_u32 v9, -2, v9")
    A("  v_mov_b32 v10, s38")
    A("  global_store_dwordx3 v57, v[8:10], s[18:19] sc1")
    A("L_noml:")
    issue_v(12)
    A("  s_cmp_lg_u32 s30, 1")
    A("  s_cbranch_scc1 L_nocnt")
    if "nocnt" in exp:
        A("  global_load_dword v18, v57, s[18:19] sc1   ; dummy")
    else:
        A("  global_load_dword v18, v58, s[16:17] sc1")
    A("L_nocnt:")
    issue_v(NL)
    A("  s_cmp_gt_u32 s30, 1")
    A("  s_cbranch_scc1 L_pv")
    A("  s_cmp_eq_u32 s30, 1")
    A("  s_cbranch_scc1 L_w1")
    A("  s_lshl_b32 s36, s31, 10")
    A("  v_lshrrev_b32 v7, 1, v3             ; l>>5")
    A("  v_lshlrev_b32 v56, 9, v7")
    A("  v_lshl_add_u32 v56, v2, 5, v56")
    A("  v_and_b32 v7, 1, v3")
    A("  v_lshl_add_u32 v56, v7, 4, v56")
    A("  v_add_u32 v56, s36, v56")
    A(f"  v_add_u32 v55, {FAST_OFF}, v56")
    A("  s_branch L_pv")
    A("L_w1:")
    A("  s_lshl_b32 s36, s28, 14")
    A("  s_lshl_b32 s37, s29, 6")
    A("  s_add_u32 s36, s36, s37")
    A("  v_lshlrev_b32 v56, 12, v3")
    A("  v_lshl_add_u32 v56, v2, 2, v56")
    A("  v_add_u32 v56, s36, v56")
    A("  s_lshl_b32 s36, s28, 9")
    A("  s_lshr_b32 s37, s29, 3")
    A("  s_lshl_b32 s37, s37, 4")
    A("  s_add_u32 s36, s36, s37")
    A(f"  s_add_u32 s36, s36, {ML_OFF}")
    A("  v_and_b32 v7, 3, v2")
    A("  v_lshl_add_u32 v7, v3, 2, v7")
    A("  v_lshlrev_b32 v57, 5, v7")
    A("  v_add_u32 v57, s36, v57")

    def pv(w1):
        for i in range(NL):
            n = NL - 1 - i
            if w1 and i != 12:
                n += 1
            lam = bitrev4(i)
            ab = 44 + 2 * (i % 4)
            for w in range(2):
                A(f"  v_and_b32_dpp v{ab+w}, v14, v{12+w} row_newbcast:{lam} row_mask:0xf bank_mask:0x5")
                A(f"  v_and_b32_dpp v{ab+w}, v15, v{12+w} row_newbcast:{lam} row_mask:0xf bank_mask:0xa")
            A(f"  s_waitcnt vmcnt({n})")
            A("  s_nop 0")
            c0 = "0" if i == 0 else "v[20:23]"
            c1 = "0" if i == 0 else "v[24:27]"
            A(f"  v_mfma_f32_16x16x16_bf16 v[20:23], v[{ab}:{ab+1}], v[{VB+4*i}:{VB+4*i+1}], {c0}")
            A(f"  v_mfma_f32_16x16x16_bf16 v[24:27], v[{ab}:{ab+1}], v[{VB+4*i+2}:{VB+4*i+3}], {c1}")
            if w1 and i == 12:
                A("  global_load_dwordx3 v[52:54], v57, s[18:19] sc1")
    stamp(5)
    pv(True)
    A("  s_branch L_pvdone")
    A("L_pv:")
    pv(False)
    A("L_pvdone:")
    stamp(6)
    A("  s_nop 7")
    for k in range(4):
        A(f"  v_permlane16_swap_b32 v{20+k}, v{24+k}")
    A("  v_pk_add_f32 v[20:21], v[20:21], v[24:25]")
    A("  v_pk_add_f32 v[22:23], v[22:23], v[26:27]")
    A(f"  ds_write_b128 v60, v[20:23] offset:{LDS_ACC}")
    A("  s_waitcnt lgkmcnt(0)")
    A("  s_barrier")
    A("  s_cmp_gt_u32 s30, 1")
    A("  s_cbranch_scc1 L_end")
    A("  s_cmp_eq_u32 s30, 1")
    A("  s_cbranch_scc1 L_cons")
    for k in range(1, NW):
        A(f"  ds_read_b128 v[{KB+4*k}:{KB+4*k+3}], v61 offset:{LDS_ACC+1024*k}")
    for k in range(1, NW):
        A(f"  s_waitcnt lgkmcnt({NW-1-k})")
        A(f"  v_pk_add_f32 v[20:21], v[20:21], v[{KB+4*k}:{KB+4*k+1}]")
        A(f"  v_pk_add_f32 v[22:23], v[22:23], v[{KB+4*k+2}:{KB+4*k+3}]")
    for j in range(4):
        A(f"  v_min_u32 v{20+j}, -2, v{20+j}")
    if "nofast" not in exp:
        A("  global_store_dwordx4 v55, v[20:23], s[18:19]")
    A("  global_store_dwordx4 v56, v[20:23], s[18:19] sc1")
    if stamps:
        A("  s_memrealtime s[96:97]")
        A("  s_waitcnt vmcnt(0)")
        A("  s_memrealtime s[98:99]")
        A("  s_waitcnt lgkmcnt(0)")
        A("  s_lshl_b32 s36, s2, 6")
        A(f"  s_add_u32 s36, s36, {128<<20}")
        A("  v_mov_b32 v7, s36")
        A("  v_mov_b32 v8, s96")
        A("  global_store_dword v7, v8, s[18:19] offset:40")
        A("  v_mov_b32 v8, s98")
        A("  global_store_dword v7, v8, s[18:19] offset:44")
    A("  s_endpgm")
    A("L_cons:")
    stamp(9)

    def issue(p):
        for m in range(4):
            A(f"  global_load_dword v{64+4*p+m}, v{44+m}, s[18:19] offset:{m*1024} sc1")
    want = S if "atomic" in exp else 0x01010101
    A(f"  v_cmp_ne_u32 vcc, {want}, v18")
    A("  s_cbranch_vccz L_cok")
    A("L_cchk:")
    A("  global_load_dword v18, v58, s[16:17] sc1")
    A("  s_waitcnt vmcnt(0)")
    A(f"  v_cmp_ne_u32 vcc, {want}, v18")
    A("  s_cbranch_vccnz L_cchk")
    A("L_mlpoll:")
    A("  global_load_dwordx3 v[52:54], v57, s[18:19] sc1")
    A("L_cok:")
    A("  s_waitcnt vmcnt(0)")
    A("  v_max3_u32 v7, v52, v53, v54")
    A("  v_cmp_eq_u32 vcc, -1, v7")
    A("  s_cbranch_vccnz L_mlpoll")
    A("  v_cmp_eq_u32 vcc, s38, v54")
    A(f"  v_mov_b32 v8, {FAST_OFF}")
    A("  v_mov_b32 v62, v52")
    A("  v_cndmask_b32 v54, 0, v8, vcc")
    A("  v_mov_b32 v63, v53")
    A("  s_nop 0")
    for m in range(4):
        A(f"  v_add_u32_dpp v{44+m}, v54, v56 row_newbcast:{m} {DPP}")
    for p in range(NP):
        issue(p)
        if sleep and p != NP - 1:
            A(f"  s_sleep {sleep}")

    def allred(op, reg, tmp):
        for sh in (2, 1):
            A("  s_nop 1")
            A(f"  {op}_dpp v{reg}, v{reg}, v{reg} row_ror:{sh} {DPP}")
        A(f"  v_mov_b32 v{tmp}, v{reg}")
        A("  s_nop 1")
        A(f"  v_permlane16_swap_b32 v{reg}, v{tmp}")
        A("  s_nop 1")
        A(f"  {op} v{reg}, v{reg}, v{tmp}")
        A(f"  v_mov_b32 v{tmp}, v{reg}")
        A("  s_nop 1")
        A(f"  v_permlane32_swap_b32 v{reg}, v{tmp}")
        A("  s_nop 1")
        A(f"  {op} v{reg}, v{reg}, v{tmp}")
    A("  v_mov_b32 v7, v62")
    allred("v_max_f32", 7, 8)
    A("  v_sub_f32 v62, v62, v7")
    A("  v_exp_f32 v62, v62")
    A("  s_nop 0")
    A("  v_mul_f32 v63, v62, v63")
    allred("v_add_f32", 63, 8)
    A("  v_rcp_f32 v63, v63")
    A("  s_lshl_b32 s36, s28, 9")
    A("  s_lshl_b32 s37, s29, 5")
    A("  s_add_u32 s36, s36, s37")
    A("  v_mul_f32 v62, v62, v63")
    A("  v_lshlrev_b32 v9, 1, v2")
    A("  v_add_u32 v9, s36, v9")
    A("L_poll:")
    for p in range(NP):
        A(f"  s_waitcnt vmcnt({4*(NP-1)})")
        b = 64 + 4 * p
        A(f"  v_max3_u32 v7, v{b}, v{b+1}, v{b+2}")
        A(f"  v_max_u32 v7, v7, v{b+3}")
        A("  v_cmp_eq_u32 vcc, -1, v7")
        A(f"  s_cbranch_vccz L_done{p}")
        issue(p)
    A("  s_branch L_poll")
    for p in range(NP):
        b = 64 + 4 * p
        A(f"L_done{p}:")
        A(f"  v_mul_f32_dpp v20, v62, v{b} row_newbcast:0 {DPP}")
        for m in range(1, 4):
            A(f"  v_fmac_f32_dpp v20, v62, v{b+m} row_newbcast:{m} {DPP}")
        if p != NP - 1:
            A("  s_branch L_fin")
    A("L_fin:")
    stamp(7)
    A("  v_mov_b32 v21, v20")
    A("  s_nop 1")
    A("  v_permlane16_swap_b32 v20, v21")
    A("  s_nop 1")
    A("  v_add_f32 v20, v20, v21")
    A("  v_mov_b32 v21, v20")
    A("  s_nop 1")
    A("  v_permlane32_swap_b32 v20, v21")
    A("  s_nop 1")
    A("  v_add_f32 v20, v20, v21")
    A("  v_cvt_pk_bf16_f32 v20, v20, v20")
    A("  s_mov_b64 exec, 0xffff")
    A("  global_store_short v9, v20, s[14:15]")
    if stamps:
        write_stamps()
    A("L_end:")
    A("  s_endpgm")
    A('.section .rodata,"a"')
    A(".p2align 6")
    A(f".amdhsa_kernel {NAME}_kernel")
    A(f"  .amdhsa_next_free_vgpr {NVGPR}")
    A("  .amdhsa_next_free_sgpr 102")
    A(f"  .amdhsa_accum_offset {(NVGPR+3)//4*4}")
    A("  .amdhsa_group_segment_fixed_size 0")
    A("  .amdhsa_kernarg_size 64")
    A("  .amdhsa_user_sgpr_count 2")
    A("  .amdhsa_user_sgpr_kernarg_segment_ptr 1")
    A("  .amdhsa_system_sgpr_workgroup_id_x 1")
    A("  .amdhsa_float_denorm_mode_32 3")
    A(".end_amdhsa_kernel")
    return "\n".join(o) + "\n"


if __name__ == "__main__":
    ap = argparse.ArgumentParser()
    ap.add_argument("-o", default="cdna_kernels/" + NAME + ".s")
    ap.add_argument("--nt", default="nt")
    ap.add_argument("--stamps", action="store_true")
    ap.add_argument("--NP", type=int, default=1)
    ap.add_argument("--sleep", type=int, default=0)
    ap.add_argument("--vfirst", type=int, default=6)
    ap.add_argument("--nokbar", action="store_true")
    ap.add_argument("--exp", default="")
    ap.add_argument("--PF", type=int, default=0)
    ap.add_argument("--PFV", type=int, default=0)
    a = ap.parse_args()
    open(a.o, "w").write(gen(a.nt, a.stamps, a.NP, a.sleep, a.vfirst, not a.nokbar, a.exp, a.PF, a.PFV))
```

```python
import argparse
from gen import HEADER, NAME


def bitrev4(n):
    return ((n & 1) << 3) | ((n & 2) << 1) | ((n & 4) >> 1) | ((n & 8) >> 3)


def gen(stamps=False, vfirst=4, PF=2, exp=""):
    S = 16; NW = 8; NL = 16; NWG = 256
    LDS_ACC = 0
    LDS_MAX = NW * 1024
    LDS_L = LDS_MAX + 128
    LDS_BYTES = LDS_L + 128
    ML_OFF = 0x40000
    FAST_OFF = 0x80000
    LANE, C, R, TOK, BASE, PG, T0 = "v1", "v2", "v3", "v4", "v5", "v6", "v7"
    Q = 8
    M0, M1, PH, PL, LRD, FILL, CNT, T1 = "v12", "v13", "v14", "v15", "v16", "v17", "v18", "v19"
    D0, D1 = 20, 24
    SA = 20
    SP, SQ = "v24", "v25"
    G = [26, 27, 28, 29]
    TX = "v30"
    OFF = ["v31", "v32"]
    AFAST, ASLOT, AML, ACNT, LWR, L16, LMX = "v33", "v34", "v35", "v36", "v37", "v38", "v39"
    KB = 40; VB = KB + 4 * NL
    NVGPR = VB + 4 * NL
    assert NVGPR == 168
    DPP = "row_mask:0xf bank_mask:0xf"
    o = []
    A = o.append

    def stamp(k):
        if stamps:
            A(f"  s_memrealtime s[{80+2*k}:{81+2*k}]")

    def write_stamps(n=10):
        A("  s_memrealtime s[96:97]")
        A("  s_waitcnt lgkmcnt(0)")
        A("  s_lshl_b32 s36, s2, 6")
        A(f"  s_add_u32 s36, s36, {128<<20}")
        A("  v_mov_b32 v7, s36")
        for k in range(n):
            A(f"  v_mov_b32 v8, s{80+2*k}")
            A(f"  global_store_dword v7, v8, s[18:19] offset:{4*k}")

    A(HEADER.rstrip("\n"))
    A(f"; @launch grid=({NWG},1,1) block=({64*NW},1,1) lds={LDS_BYTES}")
    A('.amdgcn_target "amdgcn-amd-amdhsa--gfx950"')
    A(".text")
    A(f".globl {NAME}_kernel")
    A(".p2align 8")
    A(f".type {NAME}_kernel,@function")
    A(f"{NAME}_kernel:")
    A(f"  s_cmp_ge_u32 s2, {NWG}")
    A("  s_cbranch_scc1 L_end")
    A("  s_load_dwordx16 s[4:19], s[0:1], 0")
    stamp(0)
    A(f"  v_lshrrev_b32 {T0}, 6, v0")
    A(f"  v_and_b32 {C}, 15, v0")
    A(f"  v_readfirstlane_b32 s30, {T0}          ; w")
    A(f"  v_bfe_u32 {R}, v0, 4, 2")
    A(f"  v_and_b32 {LANE}, 63, v0")
    A("  s_and_b32 s28, s2, 3")
    A("  s_lshl_b32 s28, s28, 2")
    A("  s_bfe_u32 s29, s2, 0x10003")
    A("  s_lshl_b32 s29, s29, 1")
    A("  s_or_b32 s28, s28, s29")
    A("  s_bfe_u32 s29, s2, 0x10002")
    A("  s_or_b32 s28, s28, s29                  ; hp")
    A("  s_lshr_b32 s29, s2, 4                   ; split")
    A("  s_lshl_b32 s31, s28, 4")
    A("  s_add_u32 s31, s31, s29")
    A("  s_getreg_b32 s38, hwreg(HW_REG_XCC_ID)")
    A("  s_and_b32 s38, s38, 15")
    A("  s_lshl_b32 s36, s29, 2")
    A(f"  v_lshlrev_b32 {CNT}, 6, {C}")
    A(f"  v_add_u32 {CNT}, s36, {CNT}")
    A("  s_lshl_b32 s36, s28, 9")
    A(f"  v_and_b32 {T1}, 31, v0")
    A(f"  v_lshlrev_b32 {T1}, 4, {T1}")
    A(f"  v_add_u32 {T1}, s36, {T1}")
    A(f"  v_lshrrev_b32 {T0}, 5, v0")
    A(f"  v_lshlrev_b32 {BASE}, 13, {T0}")
    A(f"  v_add_u32 {BASE}, {BASE}, {T1}")
    A("  s_lshl_b32 s36, s29, 4")
    A(f"  v_lshl_add_u32 {TOK}, {C}, 8, {T0}")
    A(f"  v_add_u32 {TOK}, s36, {TOK}")
    A("  s_lshl_b32 s36, s31, 10")
    A(f"  v_lshlrev_b32 {L16}, 4, {LANE}          ; lane*16")
    A(f"  v_add_u32 {ASLOT}, s36, {L16}")
    A(f"  v_add_u32 {AFAST}, {FAST_OFF}, {ASLOT}")
    A("  s_lshl_b32 s37, s31, 5")
    A(f"  s_add_u32 s37, s37, {ML_OFF}")
    A(f"  v_and_b32 {LRD}, 1, {R}")
    A(f"  v_lshl_add_u32 {AML}, {LRD}, 4, s37")
    A("  s_lshl_b32 s36, s29, 17")
    A(f"  v_add_u32 {OFF[0]}, s36, {BASE}")
    for k in range(4):
        A(f"  v_mov_b32 v{D0+k}, -1")
    A("  s_waitcnt lgkmcnt(0)")
    A("  s_load_dword s32, s[12:13], 0           ; context_len")
    A(f"  global_load_dword {PG}, {CNT}, s[10:11]")
    A(f"  global_load_dwordx4 v[{Q}:{Q+3}], {T1}, s[4:5]")
    for k in range(PF):
        if k:
            A(f"  v_add_u32 {OFF[0]}, {16<<17}, {OFF[0]}")
        A(f"  global_load_dwordx4 v[{VB+4*k}:{VB+4*k+3}], {OFF[0]}, s[6:7]")
    A("  s_cmp_lg_u32 s30, 7")
    A("  s_cbranch_scc1 L_noclear")
    A(f"  global_store_dwordx4 {ASLOT}, v[{D0}:{D0+3}], s[18:19] sc1")
    A(f"  global_store_dwordx4 {AML}, v[{D0}:{D0+3}], s[18:19] sc1")
    A(f"  global_store_dwordx4 {AFAST}, v[{D0}:{D0+3}], s[18:19]")
    A("L_noclear:")
    A("  s_mov_b32 s20, s6")
    A("  s_and_b32 s21, s7, 0xffff")
    A("  s_mov_b32 s22, 34078720")
    A("  s_mov_b32 s23, 0x00020000")
    A("  s_mov_b32 s24, s8")
    A("  s_and_b32 s25, s9, 0xffff")
    A("  s_mov_b32 s26, 34078720")
    A("  s_mov_b32 s27, 0x00020000")
    A("  s_mov_b32 s35, 0x3e0293ee               ; log2(e)/sqrt(128)")
    A(f"  v_and_b32 {T0}, 1, {C}")
    A(f"  v_mov_b32 {LWR}, 0xffff")
    A(f"  v_lshlrev_b32 {LMX}, 4, {T0}")
    A(f"  v_lshlrev_b32 {LWR}, {LMX}, {LWR}")
    A(f"  v_cmp_eq_u32_e64 s[42:43], 1, {T0}")
    A(f"  v_lshrrev_b32 {T0}, 3, {C}")
    A(f"  v_cmp_eq_u32 vcc, {T0}, {LRD}")
    A(f"  v_and_b32 {T0}, 2, {C}")
    A(f"  v_cmp_eq_u32_e64 s[40:41], 2, {T0}")
    A(f"  v_cndmask_b32 {LWR}, 0, {LWR}, vcc")
    A(f"  v_lshlrev_b32 {LRD}, 6, {LRD}")
    A(f"  v_lshrrev_b32 {T0}, 5, v0")
    A(f"  v_cndmask_b32_e64 {M0}, {LWR}, 0, s[40:41]")
    A(f"  v_cndmask_b32_e64 {M1}, 0, {LWR}, s[40:41]")
    A(f"  v_lshl_add_u32 {LMX}, {T0}, 2, {LRD}")
    A("  s_lshl_b32 s36, s30, 10")
    A(f"  v_add_u32 {LWR}, s36, {L16}             ; w*1024+lane*16")
    A("  s_lshl_b32 s36, s28, 4")
    A(f"  v_mov_b32 {ACNT}, s36")
    A(f"  v_mov_b32 {T0}, 1")
    A(f"  s_waitcnt vmcnt({PF}) lgkmcnt(0)")
    A("  s_cmp_lg_u32 s30, 7")
    A("  s_cbranch_scc1 L_noflag")
    A("  s_waitcnt vmcnt(0)")
    A("  s_mov_b64 exec, 1")
    A(f"  global_atomic_add {ACNT}, {T0}, s[16:17] sc1")
    A("  s_mov_b64 exec, -1")
    A("L_noflag:")
    stamp(2)
    A("  s_cmp_lt_i32 s32, 1")
    A("  s_cselect_b32 s33, 4096, s32")
    A("  s_cselect_b32 s34, 0, 0xf149f2ca")
    A("  s_min_u32 s33, s33, 4096")
    A(f"  v_lshlrev_b32 {PG}, 17, {PG}")
    A(f"  v_cmp_gt_u32 vcc, s33, {TOK}")
    A(f"  v_cmp_gt_i32_e64 s[44:45], s32, {TOK}")
    A(f"  v_mov_b32 {FILL}, s34")
    A(f"  v_cndmask_b32 {PG}, 0x40000000, {PG}, vcc")
    A("  s_nop 1")
    for n in range(NL):
        A(f"  v_add_u32_dpp {OFF[n%2]}, {PG}, {BASE} row_newbcast:{bitrev4(n)} {DPP}")
        A(f"  buffer_load_dwordx4 v[{KB+4*n}:{KB+4*n+3}], {OFF[n%2]}, s[20:23], 0 offen nt")
    issued = 0

    def issue_v(upto):
        nonlocal issued
        while issued < upto:
            i = issued
            A(f"  v_add_u32_dpp {OFF[i%2]}, {PG}, {BASE} row_newbcast:{bitrev4(i)} {DPP}")
            A(f"  buffer_load_dwordx4 v[{VB+4*i}:{VB+4*i+3}], {OFF[i%2]}, s[24:27], 0 offen nt")
            issued += 1
    A("  s_barrier")
    assert vfirst <= 12
    issue_v(vfirst)
    for g in range(4):
        n = (NL - 4 * g - 4) + issued
        A(f"  s_waitcnt vmcnt({n})")
        for j in range(4):
            for a in range(4):
                i = 4 * g + a
                c = "0" if j == 0 else f"v{SA+a}"
                A(f"  v_dot2_f32_bf16 v{SA+a}, v{KB+4*i+j}, v{Q+j}, {c}")
        A(f"  v_add_f32_dpp {SP}, v{SA}, v{SA} row_ror:8 row_mask:0xf bank_mask:0x3")
        A(f"  v_add_f32_dpp {SP}, v{SA+1}, v{SA+1} row_ror:8 row_mask:0xf bank_mask:0xc")
        A(f"  v_add_f32_dpp {SQ}, v{SA+2}, v{SA+2} row_ror:8 row_mask:0xf bank_mask:0x3")
        A(f"  v_add_f32_dpp {SQ}, v{SA+3}, v{SA+3} row_ror:8 row_mask:0xf bank_mask:0xc")
        A(f"  v_add_f32_dpp v{G[g]}, {SP}, {SP} row_ror:12 row_mask:0xf bank_mask:0x5")
        A("  s_nop 0")
        A(f"  v_add_f32_dpp v{G[g]}, {SQ}, {SQ} row_ror:4 row_mask:0xf bank_mask:0xa")
        if g in (1, 3):
            a, b = G[g - 1], G[g]
            A(f"  v_cndmask_b32_e64 {TX}, v{b}, v{a}, s[40:41]")
            A(f"  v_cndmask_b32_e64 v{a}, v{a}, v{b}, s[40:41]")
            A("  s_nop 0")
            A(f"  v_add_f32_dpp v{a}, {TX}, v{a} quad_perm:[2,3,0,1] {DPP}")
    TT = f"v{G[0]}"
    A(f"  v_cndmask_b32_e64 {TX}, v{G[2]}, v{G[0]}, s[42:43]")
    A(f"  v_cndmask_b32_e64 {TT}, v{G[0]}, v{G[2]}, s[42:43]")
    A("  s_nop 0")
    A(f"  v_add_f32_dpp {TT}, {TX}, {TT} quad_perm:[1,0,3,2] {DPP}")
    A(f"  v_mul_f32 {TT}, s35, {TT}")
    A(f"  v_cndmask_b32_e64 {TT}, {FILL}, {TT}, s[44:45]")
    A("  s_nop 1")
    A(f"  v_max_f32_dpp {T0}, {TT}, {TT} row_ror:8 {DPP}")
    for sh in (4, 2, 1):
        A("  s_nop 1")
        A(f"  v_max_f32_dpp {T0}, {T0}, {T0} row_ror:{sh} {DPP}")
    stamp(4)
    A(f"  ds_write_b32 {LMX}, {T0} offset:{LDS_MAX}")
    A("  s_waitcnt lgkmcnt(0)")
    A("  s_barrier")
    stamp(3)
    for k in range(4):
        A(f"  ds_read_b128 v[{KB+4*k}:{KB+4*k+3}], {LRD} offset:{LDS_MAX+16*k}")
    for k in range(4):
        A(f"  s_waitcnt lgkmcnt({3-k})")
        A(f"  v_max3_f32 {T0}, {T0}, v{KB+4*k}, v{KB+1+4*k}")
        A(f"  v_max3_f32 {T0}, {T0}, v{KB+4*k+2}, v{KB+3+4*k}")
    A(f"  v_sub_f32 {TT}, {TT}, {T0}")
    A(f"  v_exp_f32 {TT}, {TT}")
    A("  s_nop 0")
    A(f"  v_cvt_pk_bf16_f32 {PH}, {TT}, {TT}")
    A(f"  v_add_f32_dpp {T1}, {TT}, {TT} row_ror:8 {DPP}")
    A(f"  v_and_b32 {PL}, 0xffff0000, {PH}")
    A(f"  v_sub_f32 {PL}, {TT}, {PL}")
    A(f"  v_add_f32_dpp {T1}, {T1}, {T1} row_ror:4 {DPP}")
    A(f"  v_cvt_pk_bf16_f32 {PL}, {PL}, {PL}")
    A("  s_nop 0")
    A(f"  v_add_f32_dpp {T1}, {T1}, {T1} row_ror:2 {DPP}")
    A("  s_nop 1")
    A(f"  v_add_f32_dpp {T1}, {T1}, {T1} row_ror:1 {DPP}")
    A(f"  ds_write_b32 {LMX}, {T1} offset:{LDS_L}")
    A("  s_waitcnt lgkmcnt(0)")
    A("  s_barrier")
    stamp(1)
    A("  s_cmp_lg_u32 s30, 0")
    A("  s_cbranch_scc1 L_noml")
    for k in range(4):
        A(f"  ds_read_b128 v[{KB+4*k}:{KB+3+4*k}], {LRD} offset:{LDS_L+16*k}")
    A("  s_waitcnt lgkmcnt(0)")
    for k in range(4):
        A(f"  v_pk_add_f32 v[{KB+4*k}:{KB+4*k+1}], v[{KB+4*k}:{KB+4*k+1}], v[{KB+4*k+2}:{KB+4*k+3}]")
    A(f"  v_pk_add_f32 v[{KB}:{KB+1}], v[{KB}:{KB+1}], v[{KB+4}:{KB+5}]")
    A(f"  v_pk_add_f32 v[{KB+8}:{KB+9}], v[{KB+8}:{KB+9}], v[{KB+12}:{KB+13}]")
    A(f"  v_pk_add_f32 v[{KB}:{KB+1}], v[{KB}:{KB+1}], v[{KB+8}:{KB+9}]")
    A(f"  v_add_f32 v{Q+1}, v{KB}, v{KB+1}")
    A(f"  v_min_u32 v{Q}, -2, {T0}")
    A(f"  v_min_u32 v{Q+1}, -2, v{Q+1}")
    A(f"  v_mov_b32 v{Q+2}, s38")
    A(f"  global_store_dwordx3 {AML}, v[{Q}:{Q+2}], s[18:19] sc1")
    A("L_noml:")
    issue_v(12)
    A("  s_cmp_lg_u32 s30, 1")
    A("  s_cbranch_scc1 L_nocnt")
    A(f"  global_load_dword {CNT}, {ACNT}, s[16:17] sc1")
    A("L_nocnt:")
    issue_v(NL)
    A("  s_cmp_gt_u32 s30, 1")
    A("  s_cbranch_scc1 L_pv")
    A("  s_cmp_eq_u32 s30, 1")
    A("  s_cbranch_scc1 L_w1")
    A("  s_lshl_b32 s36, s31, 10")
    A(f"  v_lshrrev_b32 {T0}, 1, {R}")
    A(f"  v_lshlrev_b32 {ASLOT}, 9, {T0}")
    A(f"  v_lshl_add_u32 {ASLOT}, {C}, 5, {ASLOT}")
    A(f"  v_and_b32 {T0}, 1, {R}")
    A(f"  v_lshl_add_u32 {ASLOT}, {T0}, 4, {ASLOT}")
    A(f"  v_add_u32 {ASLOT}, s36, {ASLOT}")
    A(f"  v_add_u32 {AFAST}, {FAST_OFF}, {ASLOT}")
    A("  s_branch L_pv")
    A("L_w1:")
    A("  s_lshl_b32 s36, s28, 14")
    A("  s_lshl_b32 s37, s29, 6")
    A("  s_add_u32 s36, s36, s37")
    A(f"  v_lshlrev_b32 {ASLOT}, 12, {R}")
    A(f"  v_lshl_add_u32 {ASLOT}, {C}, 2, {ASLOT}")
    A(f"  v_add_u32 {ASLOT}, s36, {ASLOT}")
    A("  s_lshl_b32 s36, s28, 9")
    A("  s_lshr_b32 s37, s29, 3")
    A("  s_lshl_b32 s37, s37, 4")
    A("  s_add_u32 s36, s36, s37")
    A(f"  s_add_u32 s36, s36, {ML_OFF}")
    A(f"  v_and_b32 {T0}, 3, {C}")
    A(f"  v_lshl_add_u32 {T0}, {R}, 2, {T0}")
    A(f"  v_lshlrev_b32 {AML}, 5, {T0}")
    A(f"  v_add_u32 {AML}, s36, {AML}")
    REC = 28

    def pv(w1):
        for i in range(NL):
            n = NL - 1 - i
            if w1 and i != 12:
                n += 1
            lam = bitrev4(i)
            ab = KB + 2 * (i % 4)
            for w, M in enumerate((M0, M1)):
                A(f"  v_and_b32_dpp v{ab+w}, {PH}, {M} row_newbcast:{lam} row_mask:0xf bank_mask:0x5")
                A(f"  v_and_b32_dpp v{ab+w}, {PL}, {M} row_newbcast:{lam} row_mask:0xf bank_mask:0xa")
            A(f"  s_waitcnt vmcnt({n})")
            A("  s_nop 0")
            c0 = "0" if i == 0 else f"v[{D0}:{D0+3}]"
            c1 = "0" if i == 0 else f"v[{D1}:{D1+3}]"
            A(f"  v_mfma_f32_16x16x16_bf16 v[{D0}:{D0+3}], v[{ab}:{ab+1}], v[{VB+4*i}:{VB+4*i+1}], {c0}")
            A(f"  v_mfma_f32_16x16x16_bf16 v[{D1}:{D1+3}], v[{ab}:{ab+1}], v[{VB+4*i+2}:{VB+4*i+3}], {c1}")
            if w1 and i == 12:
                A(f"  global_load_dwordx3 v[{REC}:{REC+2}], {AML}, s[18:19] sc1")
    stamp(5)
    pv(True)
    A("  s_branch L_pvdone")
    A("L_pv:")
    pv(False)
    A("L_pvdone:")
    stamp(6)
    A("  s_nop 7")
    for k in range(4):
        A(f"  v_permlane16_swap_b32 v{D0+k}, v{D1+k}")
    A(f"  v_pk_add_f32 v[{D0}:{D0+1}], v[{D0}:{D0+1}], v[{D1}:{D1+1}]")
    A(f"  v_pk_add_f32 v[{D0+2}:{D0+3}], v[{D0+2}:{D0+3}], v[{D1+2}:{D1+3}]")
    A(f"  ds_write_b128 {LWR}, v[{D0}:{D0+3}] offset:{LDS_ACC}")
    A("  s_waitcnt lgkmcnt(0)")
    A("  s_barrier")
    A("  s_cmp_gt_u32 s30, 1")
    A("  s_cbranch_scc1 L_end")
    A("  s_cmp_eq_u32 s30, 1")
    A("  s_cbranch_scc1 L_cons")
    for k in range(1, NW):
        A(f"  ds_read_b128 v[{KB+4*k}:{KB+4*k+3}], {L16} offset:{LDS_ACC+1024*k}")
    for k in range(1, NW):
        A(f"  s_waitcnt lgkmcnt({NW-1-k})")
        A(f"  v_pk_add_f32 v[{D0}:{D0+1}], v[{D0}:{D0+1}], v[{KB+4*k}:{KB+4*k+1}]")
        A(f"  v_pk_add_f32 v[{D0+2}:{D0+3}], v[{D0+2}:{D0+3}], v[{KB+4*k+2}:{KB+4*k+3}]")
    for j in range(4):
        A(f"  v_min_u32 v{D0+j}, -2, v{D0+j}")
    A(f"  global_store_dwordx4 {AFAST}, v[{D0}:{D0+3}], s[18:19]")
    A(f"  global_store_dwordx4 {ASLOT}, v[{D0}:{D0+3}], s[18:19] sc1")
    if stamps:
        A("  s_memrealtime s[96:97]")
        A("  s_waitcnt vmcnt(0)")
        A("  s_memrealtime s[98:99]")
        A("  s_waitcnt lgkmcnt(0)")
        A("  s_lshl_b32 s36, s2, 6")
        A(f"  s_add_u32 s36, s36, {128<<20}")
        A("  v_mov_b32 v7, s36")
        A("  v_mov_b32 v8, s96")
        A("  global_store_dword v7, v8, s[18:19] offset:40")
        A("  v_mov_b32 v8, s98")
        A("  global_store_dword v7, v8, s[18:19] offset:44")
    A("  s_endpgm")
    A("L_cons:")
    stamp(9)
    GA = KB
    GV = KB + 4
    WM, WL = f"v{REC}", f"v{REC+1}"

    def issue():
        for m in range(4):
            A(f"  global_load_dword v{GV+m}, v{GA+m}, s[18:19] offset:{m*1024} sc1")
    A(f"  v_cmp_ne_u32 vcc, {S}, {CNT}")
    A("  s_cbranch_vccz L_cok")
    A("L_cchk:")
    A(f"  global_load_dword {CNT}, {ACNT}, s[16:17] sc1")
    A("  s_waitcnt vmcnt(0)")
    A(f"  v_cmp_ne_u32 vcc, {S}, {CNT}")
    A("  s_cbranch_vccnz L_cchk")
    A("L_mlpoll:")
    A(f"  global_load_dwordx3 v[{REC}:{REC+2}], {AML}, s[18:19] sc1")
    A("L_cok:")
    A("  s_waitcnt vmcnt(0)")
    A(f"  v_max3_u32 {T0}, v{REC}, v{REC+1}, v{REC+2}")
    A(f"  v_cmp_eq_u32 vcc, -1, {T0}")
    A("  s_cbranch_vccnz L_mlpoll")
    A(f"  v_cmp_eq_u32 vcc, s38, v{REC+2}")
    A(f"  v_mov_b32 {T1}, {FAST_OFF}")
    A(f"  v_mov_b32 {T0}, {WM}")
    if "slowonly" in exp:
        A(f"  v_mov_b32 v{REC+2}, 0")
    else:
        A(f"  v_cndmask_b32 v{REC+2}, 0, {T1}, vcc")
    A("  s_nop 1")
    for m in range(4):
        A(f"  v_add_u32_dpp v{GA+m}, v{REC+2}, {ASLOT} row_newbcast:{m} {DPP}")
    issue()

    def allred(op, reg, tmp):
        for sh in (2, 1):
            A("  s_nop 1")
            A(f"  {op}_dpp {reg}, {reg}, {reg} row_ror:{sh} {DPP}")
        A(f"  v_mov_b32 {tmp}, {reg}")
        A("  s_nop 1")
        A(f"  v_permlane16_swap_b32 {reg}, {tmp}")
        A("  s_nop 1")
        A(f"  {op} {reg}, {reg}, {tmp}")
        A(f"  v_mov_b32 {tmp}, {reg}")
        A("  s_nop 1")
        A(f"  v_permlane32_swap_b32 {reg}, {tmp}")
        A("  s_nop 1")
        A(f"  {op} {reg}, {reg}, {tmp}")
    allred("v_max_f32", T0, T1)
    A(f"  v_sub_f32 {WM}, {WM}, {T0}")
    A(f"  v_exp_f32 {WM}, {WM}")
    A("  s_nop 0")
    A(f"  v_mul_f32 {WL}, {WM}, {WL}")
    allred("v_add_f32", WL, T1)
    A(f"  v_rcp_f32 {WL}, {WL}")
    A("  s_lshl_b32 s36, s31, 5")
    A(f"  v_lshlrev_b32 v{Q}, 1, {C}")
    A(f"  v_mul_f32 {WM}, {WM}, {WL}")
    A(f"  v_add_u32 v{Q}, s36, v{Q}")
    A("  s_branch L_chk")
    A("L_poll:")
    issue()
    A("L_chk:")
    A("  s_waitcnt vmcnt(0)")
    A(f"  v_max3_u32 {T0}, v{GV}, v{GV+1}, v{GV+2}")
    A(f"  v_max_u32 {T0}, {T0}, v{GV+3}")
    A(f"  v_cmp_eq_u32 vcc, -1, {T0}")
    A("  s_cbranch_vccnz L_poll")
    A(f"  v_mul_f32_dpp v{D0}, {WM}, v{GV} row_newbcast:0 {DPP}")
    for m in range(1, 4):
        A(f"  v_fmac_f32_dpp v{D0}, {WM}, v{GV+m} row_newbcast:{m} {DPP}")
    stamp(7)
    A(f"  v_mov_b32 v{D0+1}, v{D0}")
    A("  s_nop 1")
    A(f"  v_permlane16_swap_b32 v{D0}, v{D0+1}")
    A("  s_nop 1")
    A(f"  v_add_f32 v{D0}, v{D0}, v{D0+1}")
    A(f"  v_mov_b32 v{D0+1}, v{D0}")
    A("  s_nop 1")
    A(f"  v_permlane32_swap_b32 v{D0}, v{D0+1}")
    A("  s_nop 1")
    A(f"  v_add_f32 v{D0}, v{D0}, v{D0+1}")
    A(f"  v_cvt_pk_bf16_f32 v{D0}, v{D0}, v{D0}")
    A("  s_mov_b64 exec, 0xffff")
    A(f"  global_store_short v{Q}, v{D0}, s[14:15]")
    if stamps:
        write_stamps()
    A("L_end:")
    A("  s_endpgm")
    A('.section .rodata,"a"')
    A(".p2align 6")
    A(f".amdhsa_kernel {NAME}_kernel")
    A(f"  .amdhsa_next_free_vgpr {NVGPR}")
    A(f"  .amdhsa_next_free_sgpr {102 if stamps else 48}")
    A(f"  .amdhsa_accum_offset {(NVGPR+3)//4*4}")
    A("  .amdhsa_group_segment_fixed_size 0")
    A("  .amdhsa_kernarg_size 64")
    A("  .amdhsa_user_sgpr_count 2")
    A("  .amdhsa_user_sgpr_kernarg_segment_ptr 1")
    A("  .amdhsa_system_sgpr_workgroup_id_x 1")
    A("  .amdhsa_float_denorm_mode_32 3")
    A(".end_amdhsa_kernel")
    return "\n".join(o) + "\n"


if __name__ == "__main__":
    ap = argparse.ArgumentParser()
    ap.add_argument("-o", default="cdna_kernels/" + NAME + ".s")
    ap.add_argument("--stamps", action="store_true")
    ap.add_argument("--vfirst", type=int, default=4)
    ap.add_argument("--PF", type=int, default=2)
    ap.add_argument("--exp", default="")
    a = ap.parse_args()
    open(a.o, "w").write(gen(a.stamps, a.vfirst, a.PF, a.exp))
```

```python
import argparse
from gen import HEADER, NAME


def bitrev4(n):
    return ((n & 1) << 3) | ((n & 2) << 1) | ((n & 4) >> 1) | ((n & 8) >> 3)


def gen(stamps=False, vfirst=4, PF=2, exp="", PF2=0):
    S = 16; NW = 8; NL = 16; NWG = 256
    LDS_ACC = 0
    LDS_MAX = NW * 1024
    LDS_L = LDS_MAX + 128
    LDS_BYTES = LDS_L + 128
    ML_OFF = 0x40000
    FAST_OFF = 0x80000
    LANE, C, R, TOK, BASE, PG, T0 = "v1", "v2", "v3", "v4", "v5", "v6", "v7"
    Q = 8
    M0, M1, PH, PL, LRD, FILL, CNT, T1 = "v12", "v13", "v14", "v15", "v16", "v17", "v18", "v19"
    D0, D1 = 20, 24
    SA = 20
    SP, SQ = "v24", "v25"
    G = [26, 27, 28, 29]
    TX = "v30"
    OFF = ["v31", "v32"]
    AFAST, ASLOT, AML, ACNT, LWR, L16, LMX = "v33", "v34", "v35", "v36", "v37", "v38", "v39"
    KB = 40; VB = KB + 4 * NL
    NVGPR = VB + 4 * NL
    assert NVGPR == 168
    DPP = "row_mask:0xf bank_mask:0xf"
    o = []
    A = o.append

    def stamp(k):
        if stamps:
            A(f"  s_memrealtime s[{80+2*k}:{81+2*k}]")

    def write_stamps(n=10):
        A("  s_memrealtime s[96:97]")
        A("  s_waitcnt lgkmcnt(0)")
        A("  s_lshl_b32 s36, s2, 6")
        A(f"  s_add_u32 s36, s36, {128<<20}")
        A("  v_mov_b32 v7, s36")
        for k in range(n):
            A(f"  v_mov_b32 v8, s{80+2*k}")
            A(f"  global_store_dword v7, v8, s[18:19] offset:{4*k}")

    A(HEADER.rstrip("\n"))
    A(f"; @launch grid=({NWG},1,1) block=({64*NW},1,1) lds={LDS_BYTES}")
    A('.amdgcn_target "amdgcn-amd-amdhsa--gfx950"')
    A(".text")
    A(f".globl {NAME}_kernel")
    A(".p2align 8")
    A(f".type {NAME}_kernel,@function")
    A(f"{NAME}_kernel:")
    A(f"  s_cmp_ge_u32 s2, {NWG}")
    A("  s_cbranch_scc1 L_end")
    A("  s_load_dwordx16 s[4:19], s[0:1], 0")
    stamp(0)
    A(f"  v_lshrrev_b32 {T0}, 6, v0")
    A(f"  v_and_b32 {C}, 15, v0")
    A(f"  v_readfirstlane_b32 s30, {T0}          ; w")
    A(f"  v_bfe_u32 {R}, v0, 4, 2")
    A(f"  v_and_b32 {LANE}, 63, v0")
    A("  s_and_b32 s28, s2, 3")
    A("  s_lshl_b32 s28, s28, 2")
    A("  s_bfe_u32 s29, s2, 0x10003")
    A("  s_lshl_b32 s29, s29, 1")
    A("  s_or_b32 s28, s28, s29")
    A("  s_bfe_u32 s29, s2, 0x10002")
    A("  s_or_b32 s28, s28, s29                  ; hp")
    A("  s_lshr_b32 s29, s2, 4                   ; split")
    A("  s_lshl_b32 s31, s28, 4")
    A("  s_add_u32 s31, s31, s29")
    A("  s_getreg_b32 s38, hwreg(HW_REG_XCC_ID)")
    A("  s_and_b32 s38, s38, 15")
    A("  s_lshl_b32 s36, s29, 2")
    A(f"  v_lshlrev_b32 {CNT}, 6, {C}")
    A(f"  v_add_u32 {CNT}, s36, {CNT}")
    A("  s_lshl_b32 s36, s28, 9")
    A(f"  v_and_b32 {T1}, 31, v0")
    A(f"  v_lshlrev_b32 {T1}, 4, {T1}")
    A(f"  v_add_u32 {T1}, s36, {T1}")
    A(f"  v_lshrrev_b32 {T0}, 5, v0")
    A(f"  v_lshlrev_b32 {BASE}, 13, {T0}")
    A(f"  v_add_u32 {BASE}, {BASE}, {T1}")
    A("  s_lshl_b32 s36, s29, 4")
    A(f"  v_lshl_add_u32 {TOK}, {C}, 8, {T0}")
    A(f"  v_add_u32 {TOK}, s36, {TOK}")
    A("  s_lshl_b32 s36, s31, 10")
    A(f"  v_lshlrev_b32 {L16}, 4, {LANE}          ; lane*16")
    A(f"  v_add_u32 {ASLOT}, s36, {L16}")
    A(f"  v_add_u32 {AFAST}, {FAST_OFF}, {ASLOT}")
    A("  s_lshl_b32 s37, s31, 5")
    A(f"  s_add_u32 s37, s37, {ML_OFF}")
    A(f"  v_and_b32 {LRD}, 1, {R}")
    A(f"  v_lshl_add_u32 {AML}, {LRD}, 4, s37")
    A("  s_lshl_b32 s36, s29, 17")
    A(f"  v_add_u32 {OFF[0]}, s36, {BASE}")
    for k in range(4):
        A(f"  v_mov_b32 v{D0+k}, -1")
    A("  s_waitcnt lgkmcnt(0)")
    A("  s_load_dword s32, s[12:13], 0           ; context_len")
    A(f"  global_load_dword {PG}, {CNT}, s[10:11]")
    A(f"  global_load_dwordx4 v[{Q}:{Q+3}], {T1}, s[4:5]")
    for k in range(PF):
        if k:
            A(f"  v_add_u32 {OFF[0]}, {16<<17}, {OFF[0]}")
        A(f"  global_load_dwordx4 v[{VB+4*k}:{VB+4*k+3}], {OFF[0]}, s[6:7]")
    if PF2:
        A("  s_bitcmp0_b32 s2, 2")
        A("  s_cbranch_scc1 L_nopf2")
        for k in range(PF, PF + PF2):
            if k:
                A(f"  v_add_u32 {OFF[0]}, {16<<17}, {OFF[0]}")
            A(f"  global_load_dwordx4 v[{VB+4*k}:{VB+4*k+3}], {OFF[0]}, s[6:7]")
        A("L_nopf2:")
    A("  s_cmp_lg_u32 s30, 7")
    A("  s_cbranch_scc1 L_noclear")
    A(f"  global_store_dwordx4 {ASLOT}, v[{D0}:{D0+3}], s[18:19] sc1")
    A(f"  global_store_dwordx4 {AML}, v[{D0}:{D0+3}], s[18:19] sc1")
    A(f"  global_store_dwordx4 {AFAST}, v[{D0}:{D0+3}], s[18:19]")
    A("L_noclear:")
    A("  s_mov_b32 s20, s6")
    A("  s_and_b32 s21, s7, 0xffff")
    A("  s_mov_b32 s22, 34078720")
    A("  s_mov_b32 s23, 0x00020000")
    A("  s_mov_b32 s24, s8")
    A("  s_and_b32 s25, s9, 0xffff")
    A("  s_mov_b32 s26, 34078720")
    A("  s_mov_b32 s27, 0x00020000")
    A("  s_mov_b32 s35, 0x3e0293ee               ; log2(e)/sqrt(128)")
    A(f"  v_and_b32 {T0}, 1, {C}")
    A(f"  v_mov_b32 {LWR}, 0xffff")
    A(f"  v_lshlrev_b32 {LMX}, 4, {T0}")
    A(f"  v_lshlrev_b32 {LWR}, {LMX}, {LWR}")
    A(f"  v_cmp_eq_u32_e64 s[42:43], 1, {T0}")
    A(f"  v_lshrrev_b32 {T0}, 3, {C}")
    A(f"  v_cmp_eq_u32 vcc, {T0}, {LRD}")
    A(f"  v_and_b32 {T0}, 2, {C}")
    A(f"  v_cmp_eq_u32_e64 s[40:41], 2, {T0}")
    A(f"  v_cndmask_b32 {LWR}, 0, {LWR}, vcc")
    A(f"  v_lshlrev_b32 {LRD}, 6, {LRD}")
    A(f"  v_lshrrev_b32 {T0}, 5, v0")
    A(f"  v_cndmask_b32_e64 {M0}, {LWR}, 0, s[40:41]")
    A(f"  v_cndmask_b32_e64 {M1}, 0, {LWR}, s[40:41]")
    A(f"  v_lshl_add_u32 {LMX}, {T0}, 2, {LRD}")
    A("  s_lshl_b32 s36, s30, 10")
    A(f"  v_add_u32 {LWR}, s36, {L16}             ; w*1024+lane*16")
    A("  s_lshl_b32 s36, s28, 4")
    A(f"  v_mov_b32 {ACNT}, s36")
    A(f"  v_mov_b32 {T0}, 1")
    if PF2:
        A("  s_bitcmp0_b32 s2, 2")
        A("  s_cbranch_scc1 L_wpf")
        A(f"  s_waitcnt vmcnt({PF+PF2}) lgkmcnt(0)")
        A("  s_branch L_wpf2")
        A("L_wpf:")
        A(f"  s_waitcnt vmcnt({PF}) lgkmcnt(0)")
        A("L_wpf2:")
    else:
        A(f"  s_waitcnt vmcnt({PF}) lgkmcnt(0)")
    A("  s_cmp_lg_u32 s30, 7")
    A("  s_cbranch_scc1 L_noflag")
    A("  s_waitcnt vmcnt(0)")
    A("  s_mov_b64 exec, 1")
    A(f"  global_atomic_add {ACNT}, {T0}, s[16:17] sc1")
    A("  s_mov_b64 exec, -1")
    A("L_noflag:")
    stamp(2)
    A("  s_cmp_lt_i32 s32, 1")
    A("  s_cselect_b32 s33, 4096, s32")
    A("  s_cselect_b32 s34, 0, 0xf149f2ca")
    A("  s_min_u32 s33, s33, 4096")
    A(f"  v_lshlrev_b32 {PG}, 17, {PG}")
    A(f"  v_cmp_gt_u32 vcc, s33, {TOK}")
    A(f"  v_cmp_gt_i32_e64 s[44:45], s32, {TOK}")
    A(f"  v_mov_b32 {FILL}, s34")
    A(f"  v_cndmask_b32 {PG}, 0x40000000, {PG}, vcc")
    A("  s_nop 1")
    for n in range(NL):
        A(f"  v_add_u32_dpp {OFF[n%2]}, {PG}, {BASE} row_newbcast:{bitrev4(n)} {DPP}")
        A(f"  buffer_load_dwordx4 v[{KB+4*n}:{KB+4*n+3}], {OFF[n%2]}, s[20:23], 0 offen nt")
    issued = 0

    def issue_v(upto):
        nonlocal issued
        while issued < upto:
            i = issued
            A(f"  v_add_u32_dpp {OFF[i%2]}, {PG}, {BASE} row_newbcast:{bitrev4(i)} {DPP}")
            A(f"  buffer_load_dwordx4 v[{VB+4*i}:{VB+4*i+3}], {OFF[i%2]}, s[24:27], 0 offen nt")
            issued += 1
    A("  s_barrier")
    assert vfirst <= 12
    issue_v(vfirst)
    for g in range(4):
        n = (NL - 4 * g - 4) + issued
        A(f"  s_waitcnt vmcnt({n})")
        for j in range(4):
            for a in range(4):
                i = 4 * g + a
                c = "0" if j == 0 else f"v{SA+a}"
                A(f"  v_dot2_f32_bf16 v{SA+a}, v{KB+4*i+j}, v{Q+j}, {c}")
        A(f"  v_add_f32_dpp {SP}, v{SA}, v{SA} row_ror:8 row_mask:0xf bank_mask:0x3")
        A(f"  v_add_f32_dpp {SP}, v{SA+1}, v{SA+1} row_ror:8 row_mask:0xf bank_mask:0xc")
        A(f"  v_add_f32_dpp {SQ}, v{SA+2}, v{SA+2} row_ror:8 row_mask:0xf bank_mask:0x3")
        A(f"  v_add_f32_dpp {SQ}, v{SA+3}, v{SA+3} row_ror:8 row_mask:0xf bank_mask:0xc")
        A(f"  v_add_f32_dpp v{G[g]}, {SP}, {SP} row_ror:12 row_mask:0xf bank_mask:0x5")
        A("  s_nop 0")
        A(f"  v_add_f32_dpp v{G[g]}, {SQ}, {SQ} row_ror:4 row_mask:0xf bank_mask:0xa")
        if g in (1, 3):
            a, b = G[g - 1], G[g]
            A(f"  v_cndmask_b32_e64 {TX}, v{b}, v{a}, s[40:41]")
            A(f"  v_cndmask_b32_e64 v{a}, v{a}, v{b}, s[40:41]")
            A("  s_nop 0")
            A(f"  v_add_f32_dpp v{a}, {TX}, v{a} quad_perm:[2,3,0,1] {DPP}")
    TT = f"v{G[0]}"
    A(f"  v_cndmask_b32_e64 {TX}, v{G[2]}, v{G[0]}, s[42:43]")
    A(f"  v_cndmask_b32_e64 {TT}, v{G[0]}, v{G[2]}, s[42:43]")
    A("  s_nop 0")
    A(f"  v_add_f32_dpp {TT}, {TX}, {TT} quad_perm:[1,0,3,2] {DPP}")
    A(f"  v_mul_f32 {TT}, s35, {TT}")
    A(f"  v_cndmask_b32_e64 {TT}, {FILL}, {TT}, s[44:45]")
    A("  s_nop 1")
    A(f"  v_max_f32_dpp {T0}, {TT}, {TT} row_ror:8 {DPP}")
    for sh in (4, 2, 1):
        A("  s_nop 1")
        A(f"  v_max_f32_dpp {T0}, {T0}, {T0} row_ror:{sh} {DPP}")
    stamp(4)
    A(f"  ds_write_b32 {LMX}, {T0} offset:{LDS_MAX}")
    A("  s_waitcnt lgkmcnt(0)")
    A("  s_barrier")
    stamp(3)
    for k in range(4):
        A(f"  ds_read_b128 v[{KB+4*k}:{KB+4*k+3}], {LRD} offset:{LDS_MAX+16*k}")
    for k in range(4):
        A(f"  s_waitcnt lgkmcnt({3-k})")
        A(f"  v_max3_f32 {T0}, {T0}, v{KB+4*k}, v{KB+1+4*k}")
        A(f"  v_max3_f32 {T0}, {T0}, v{KB+4*k+2}, v{KB+3+4*k}")
    A(f"  v_sub_f32 {TT}, {TT}, {T0}")
    A(f"  v_exp_f32 {TT}, {TT}")
    A("  s_nop 0")
    A(f"  v_cvt_pk_bf16_f32 {PH}, {TT}, {TT}")
    A(f"  v_add_f32_dpp {T1}, {TT}, {TT} row_ror:8 {DPP}")
    A(f"  v_and_b32 {PL}, 0xffff0000, {PH}")
    A(f"  v_sub_f32 {PL}, {TT}, {PL}")
    A(f"  v_add_f32_dpp {T1}, {T1}, {T1} row_ror:4 {DPP}")
    A(f"  v_cvt_pk_bf16_f32 {PL}, {PL}, {PL}")
    A("  s_nop 0")
    A(f"  v_add_f32_dpp {T1}, {T1}, {T1} row_ror:2 {DPP}")
    A("  s_nop 1")
    A(f"  v_add_f32_dpp {T1}, {T1}, {T1} row_ror:1 {DPP}")
    A(f"  ds_write_b32 {LMX}, {T1} offset:{LDS_L}")
    A("  s_waitcnt lgkmcnt(0)")
    A("  s_barrier")
    stamp(1)
    A("  s_cmp_lg_u32 s30, 0")
    A("  s_cbranch_scc1 L_noml")
    for k in range(4):
        A(f"  ds_read_b128 v[{KB+4*k}:{KB+3+4*k}], {LRD} offset:{LDS_L+16*k}")
    A("  s_waitcnt lgkmcnt(0)")
    for k in range(4):
        A(f"  v_pk_add_f32 v[{KB+4*k}:{KB+4*k+1}], v[{KB+4*k}:{KB+4*k+1}], v[{KB+4*k+2}:{KB+4*k+3}]")
    A(f"  v_pk_add_f32 v[{KB}:{KB+1}], v[{KB}:{KB+1}], v[{KB+4}:{KB+5}]")
    A(f"  v_pk_add_f32 v[{KB+8}:{KB+9}], v[{KB+8}:{KB+9}], v[{KB+12}:{KB+13}]")
    A(f"  v_pk_add_f32 v[{KB}:{KB+1}], v[{KB}:{KB+1}], v[{KB+8}:{KB+9}]")
    A(f"  v_add_f32 v{Q+1}, v{KB}, v{KB+1}")
    A(f"  v_min_u32 v{Q}, -2, {T0}")
    A(f"  v_min_u32 v{Q+1}, -2, v{Q+1}")
    A(f"  v_mov_b32 v{Q+2}, s38")
    A(f"  global_store_dwordx3 {AML}, v[{Q}:{Q+2}], s[18:19] sc1")
    A("L_noml:")
    issue_v(12)
    A("  s_cmp_lg_u32 s30, 1")
    A("  s_cbranch_scc1 L_nocnt")
    A(f"  global_load_dword {CNT}, {ACNT}, s[16:17] sc1")
    A("L_nocnt:")
    issue_v(NL)
    A("  s_cmp_gt_u32 s30, 1")
    A("  s_cbranch_scc1 L_pv")
    A("  s_cmp_eq_u32 s30, 1")
    A("  s_cbranch_scc1 L_w1")
    A("  s_lshl_b32 s36, s31, 10")
    A(f"  v_lshrrev_b32 {T0}, 1, {R}")
    A(f"  v_lshlrev_b32 {ASLOT}, 9, {T0}")
    A(f"  v_lshl_add_u32 {ASLOT}, {C}, 5, {ASLOT}")
    A(f"  v_and_b32 {T0}, 1, {R}")
    A(f"  v_lshl_add_u32 {ASLOT}, {T0}, 4, {ASLOT}")
    A(f"  v_add_u32 {ASLOT}, s36, {ASLOT}")
    A(f"  v_add_u32 {AFAST}, {FAST_OFF}, {ASLOT}")
    A("  s_branch L_pv")
    A("L_w1:")
    A("  s_lshl_b32 s36, s28, 14")
    A("  s_lshl_b32 s37, s29, 6")
    A("  s_add_u32 s36, s36, s37")
    A(f"  v_lshlrev_b32 {ASLOT}, 12, {R}")
    A(f"  v_lshl_add_u32 {ASLOT}, {C}, 2, {ASLOT}")
    A(f"  v_add_u32 {ASLOT}, s36, {ASLOT}")
    A("  s_lshl_b32 s36, s28, 9")
    A("  s_lshr_b32 s37, s29, 3")
    A("  s_lshl_b32 s37, s37, 4")
    A("  s_add_u32 s36, s36, s37")
    A(f"  s_add_u32 s36, s36, {ML_OFF}")
    A(f"  v_and_b32 {T0}, 3, {C}")
    A(f"  v_lshl_add_u32 {T0}, {R}, 2, {T0}")
    A(f"  v_lshlrev_b32 {AML}, 5, {T0}")
    A(f"  v_add_u32 {AML}, s36, {AML}")
    REC = 28

    def pv(w1):
        for i in range(NL):
            n = NL - 1 - i
            if w1 and i != 12:
                n += 1
            lam = bitrev4(i)
            ab = KB + 2 * (i % 4)
            for w, M in enumerate((M0, M1)):
                A(f"  v_and_b32_dpp v{ab+w}, {PH}, {M} row_newbcast:{lam} row_mask:0xf bank_mask:0x5")
                A(f"  v_and_b32_dpp v{ab+w}, {PL}, {M} row_newbcast:{lam} row_mask:0xf bank_mask:0xa")
            A(f"  s_waitcnt vmcnt({n})")
            A("  s_nop 0")
            c0 = "0" if i == 0 else f"v[{D0}:{D0+3}]"
            c1 = "0" if i == 0 else f"v[{D1}:{D1+3}]"
            A(f"  v_mfma_f32_16x16x16_bf16 v[{D0}:{D0+3}], v[{ab}:{ab+1}], v[{VB+4*i}:{VB+4*i+1}], {c0}")
            A(f"  v_mfma_f32_16x16x16_bf16 v[{D1}:{D1+3}], v[{ab}:{ab+1}], v[{VB+4*i+2}:{VB+4*i+3}], {c1}")
            if w1 and i == 12:
                A(f"  global_load_dwordx3 v[{REC}:{REC+2}], {AML}, s[18:19] sc1")
    stamp(5)
    pv(True)
    A("  s_branch L_pvdone")
    A("L_pv:")
    pv(False)
    A("L_pvdone:")
    stamp(6)
    A("  s_nop 7")
    for k in range(4):
        A(f"  v_permlane16_swap_b32 v{D0+k}, v{D1+k}")
    A(f"  v_pk_add_f32 v[{D0}:{D0+1}], v[{D0}:{D0+1}], v[{D1}:{D1+1}]")
    A(f"  v_pk_add_f32 v[{D0+2}:{D0+3}], v[{D0+2}:{D0+3}], v[{D1+2}:{D1+3}]")
    A(f"  ds_write_b128 {LWR}, v[{D0}:{D0+3}] offset:{LDS_ACC}")
    A("  s_waitcnt lgkmcnt(0)")
    A("  s_barrier")
    A("  s_cmp_gt_u32 s30, 1")
    A("  s_cbranch_scc1 L_end")
    A("  s_cmp_eq_u32 s30, 1")
    A("  s_cbranch_scc1 L_cons")
    for k in range(1, NW):
        A(f"  ds_read_b128 v[{KB+4*k}:{KB+4*k+3}], {L16} offset:{LDS_ACC+1024*k}")
    for k in range(1, NW):
        A(f"  s_waitcnt lgkmcnt({NW-1-k})")
        A(f"  v_pk_add_f32 v[{D0}:{D0+1}], v[{D0}:{D0+1}], v[{KB+4*k}:{KB+4*k+1}]")
        A(f"  v_pk_add_f32 v[{D0+2}:{D0+3}], v[{D0+2}:{D0+3}], v[{KB+4*k+2}:{KB+4*k+3}]")
    for j in range(4):
        A(f"  v_min_u32 v{D0+j}, -2, v{D0+j}")
    A(f"  global_store_dwordx4 {AFAST}, v[{D0}:{D0+3}], s[18:19]")
    A(f"  global_store_dwordx4 {ASLOT}, v[{D0}:{D0+3}], s[18:19] sc1")
    if stamps:
        A("  s_memrealtime s[96:97]")
        A("  s_waitcnt vmcnt(0)")
        A("  s_memrealtime s[98:99]")
        A("  s_waitcnt lgkmcnt(0)")
        A("  s_lshl_b32 s36, s2, 6")
        A(f"  s_add_u32 s36, s36, {128<<20}")
        A("  v_mov_b32 v7, s36")
        A("  v_mov_b32 v8, s96")
        A("  global_store_dword v7, v8, s[18:19] offset:40")
        A("  v_mov_b32 v8, s98")
        A("  global_store_dword v7, v8, s[18:19] offset:44")
    A("  s_endpgm")
    A("L_cons:")
    stamp(9)
    GA = KB
    GV = KB + 4
    WM, WL = f"v{REC}", f"v{REC+1}"

    def issue():
        for m in range(4):
            A(f"  global_load_dword v{GV+m}, v{GA+m}, s[18:19] offset:{m*1024} sc1")
    A("  s_mov_b32 s39, 0x400000")
    A(f"  v_cmp_gt_u32 vcc, {S}, {CNT}")
    A("  s_cbranch_vccz L_cok")
    A("L_cchk:")
    A(f"  global_load_dword {CNT}, {ACNT}, s[16:17] sc1")
    A("  s_sub_u32 s39, s39, 1")
    A("  s_cbranch_scc1 L_end")
    A("  s_waitcnt vmcnt(0)")
    A(f"  v_cmp_gt_u32 vcc, {S}, {CNT}")
    A("  s_cbranch_vccnz L_cchk")
    A("L_mlpoll:")
    A(f"  global_load_dwordx3 v[{REC}:{REC+2}], {AML}, s[18:19] sc1")
    A("  s_sub_u32 s39, s39, 1")
    A("  s_cbranch_scc1 L_end")
    A("L_cok:")
    A("  s_waitcnt vmcnt(0)")
    A(f"  v_max3_u32 {T0}, v{REC}, v{REC+1}, v{REC+2}")
    A(f"  v_cmp_eq_u32 vcc, -1, {T0}")
    A("  s_cbranch_vccnz L_mlpoll")
    A(f"  v_cmp_eq_u32 vcc, s38, v{REC+2}")
    A(f"  v_mov_b32 {T1}, {FAST_OFF}")
    A(f"  v_mov_b32 {T0}, {WM}")
    if "slowonly" in exp:
        A(f"  v_mov_b32 v{REC+2}, 0")
    else:
        A(f"  v_cndmask_b32 v{REC+2}, 0, {T1}, vcc")
    A("  s_nop 1")
    for m in range(4):
        A(f"  v_add_u32_dpp v{GA+m}, v{REC+2}, {ASLOT} row_newbcast:{m} {DPP}")
    issue()

    def allred(op, reg, tmp):
        for sh in (2, 1):
            A("  s_nop 1")
            A(f"  {op}_dpp {reg}, {reg}, {reg} row_ror:{sh} {DPP}")
        A(f"  v_mov_b32 {tmp}, {reg}")
        A("  s_nop 1")
        A(f"  v_permlane16_swap_b32 {reg}, {tmp}")
        A("  s_nop 1")
        A(f"  {op} {reg}, {reg}, {tmp}")
        A(f"  v_mov_b32 {tmp}, {reg}")
        A("  s_nop 1")
        A(f"  v_permlane32_swap_b32 {reg}, {tmp}")
        A("  s_nop 1")
        A(f"  {op} {reg}, {reg}, {tmp}")
    allred("v_max_f32", T0, T1)
    A(f"  v_sub_f32 {WM}, {WM}, {T0}")
    A(f"  v_exp_f32 {WM}, {WM}")
    A("  s_nop 0")
    A(f"  v_mul_f32 {WL}, {WM}, {WL}")
    allred("v_add_f32", WL, T1)
    A(f"  v_rcp_f32 {WL}, {WL}")
    A("  s_lshl_b32 s36, s31, 5")
    A(f"  v_lshlrev_b32 v{Q}, 1, {C}")
    A(f"  v_mul_f32 {WM}, {WM}, {WL}")
    A(f"  v_add_u32 v{Q}, s36, v{Q}")
    A("  s_branch L_chk")
    A("L_poll:")
    issue()
    A("  s_sub_u32 s39, s39, 1")
    A("  s_cbranch_scc1 L_end")
    A("L_chk:")
    A("  s_waitcnt vmcnt(0)")
    A(f"  v_max3_u32 {T0}, v{GV}, v{GV+1}, v{GV+2}")
    A(f"  v_max_u32 {T0}, {T0}, v{GV+3}")
    A(f"  v_cmp_eq_u32 vcc, -1, {T0}")
    A("  s_cbranch_vccnz L_poll")
    A(f"  v_mul_f32_dpp v{D0}, {WM}, v{GV} row_newbcast:0 {DPP}")
    for m in range(1, 4):
        A(f"  v_fmac_f32_dpp v{D0}, {WM}, v{GV+m} row_newbcast:{m} {DPP}")
    stamp(7)
    A(f"  v_mov_b32 v{D0+1}, v{D0}")
    A("  s_nop 1")
    A(f"  v_permlane16_swap_b32 v{D0}, v{D0+1}")
    A("  s_nop 1")
    A(f"  v_add_f32 v{D0}, v{D0}, v{D0+1}")
    A(f"  v_mov_b32 v{D0+1}, v{D0}")
    A("  s_nop 1")
    A(f"  v_permlane32_swap_b32 v{D0}, v{D0+1}")
    A("  s_nop 1")
    A(f"  v_add_f32 v{D0}, v{D0}, v{D0+1}")
    A(f"  v_cvt_pk_bf16_f32 v{D0}, v{D0}, v{D0}")
    A("  s_mov_b64 exec, 0xffff")
    A(f"  global_store_short v{Q}, v{D0}, s[14:15]")
    if stamps:
        write_stamps()
    A("L_end:")
    A("  s_endpgm")
    A('.section .rodata,"a"')
    A(".p2align 6")
    A(f".amdhsa_kernel {NAME}_kernel")
    A(f"  .amdhsa_next_free_vgpr {NVGPR}")
    A(f"  .amdhsa_next_free_sgpr {102 if stamps else 48}")
    A(f"  .amdhsa_accum_offset {(NVGPR+3)//4*4}")
    A("  .amdhsa_group_segment_fixed_size 0")
    A("  .amdhsa_kernarg_size 64")
    A("  .amdhsa_user_sgpr_count 2")
    A("  .amdhsa_user_sgpr_kernarg_segment_ptr 1")
    A("  .amdhsa_system_sgpr_workgroup_id_x 1")
    A("  .amdhsa_float_denorm_mode_32 3")
    A(".end_amdhsa_kernel")
    return "\n".join(o) + "\n"


if __name__ == "__main__":
    ap = argparse.ArgumentParser()
    ap.add_argument("-o", default="cdna_kernels/" + NAME + ".s")
    ap.add_argument("--stamps", action="store_true")
    ap.add_argument("--vfirst", type=int, default=4)
    ap.add_argument("--PF", type=int, default=2)
    ap.add_argument("--exp", default="")
    ap.add_argument("--PF2", type=int, default=0)
    a = ap.parse_args()
    open(a.o, "w").write(gen(a.stamps, a.vfirst, a.PF, a.exp, a.PF2))
```

```python
import argparse
from gen import HEADER, NAME


def bitrev4(n):
    return ((n & 1) << 3) | ((n & 2) << 1) | ((n & 4) >> 1) | ((n & 8) >> 3)


def gen(stamps=False, vfirst=4, PF=2, exp="", PF2=0, W=3, WX=2, wmask=0x55, W2=0):
    S = 16; NW = 8; NL = 16; NWG = 256
    LDS_ACC = 0
    LDS_MAX = NW * 1024
    LDS_L = LDS_MAX + 128
    LDS_BYTES = LDS_L + 128
    ML_OFF = 0x40000
    FAST_OFF = 0x80000
    LANE, C, R, TOK, BASE, PG, T0 = "v1", "v2", "v3", "v4", "v5", "v6", "v7"
    Q = 8
    M0, M1, PH, PL, LRD, FILL, CNT, T1 = "v12", "v13", "v14", "v15", "v16", "v17", "v18", "v19"
    D0, D1 = 20, 24
    SA = 20
    SP, SQ = "v24", "v25"
    G = [26, 27, 28, 29]
    TX = "v30"
    OFF = ["v31", "v32"]
    AFAST, ASLOT, AML, ACNT, LWR, L16, LMX = "v33", "v34", "v35", "v36", "v37", "v38", "v39"
    KB = 40; VB = KB + 4 * NL
    NVGPR = VB + 4 * NL
    assert NVGPR == 168
    DPP = "row_mask:0xf bank_mask:0xf"
    o = []
    A = o.append

    def stamp(k):
        if stamps:
            A(f"  s_memrealtime s[{80+2*k}:{81+2*k}]")

    def write_stamps(n=10):
        A("  s_memrealtime s[96:97]")
        A("  s_waitcnt lgkmcnt(0)")
        A("  s_lshl_b32 s36, s2, 6")
        A(f"  s_add_u32 s36, s36, {128<<20}")
        A("  v_mov_b32 v7, s36")
        for k in range(n):
            A(f"  v_mov_b32 v8, s{80+2*k}")
            A(f"  global_store_dword v7, v8, s[18:19] offset:{4*k}")

    A(HEADER.rstrip("\n"))
    A(f"; @launch grid=({NWG},1,1) block=({64*NW},1,1) lds={LDS_BYTES}")
    A('.amdgcn_target "amdgcn-amd-amdhsa--gfx950"')
    A(".text")
    A(f".globl {NAME}_kernel")
    A(".p2align 8")
    A(f".type {NAME}_kernel,@function")
    A(f"{NAME}_kernel:")
    A(f"  s_cmp_ge_u32 s2, {NWG}")
    A("  s_cbranch_scc1 L_end")
    A("  s_load_dwordx16 s[4:19], s[0:1], 0")
    stamp(0)
    A(f"  v_lshrrev_b32 {T0}, 6, v0")
    A(f"  v_and_b32 {C}, 15, v0")
    A(f"  v_readfirstlane_b32 s30, {T0}          ; w")
    A(f"  v_bfe_u32 {R}, v0, 4, 2")
    A(f"  v_and_b32 {LANE}, 63, v0")
    A("  s_and_b32 s28, s2, 3")
    A("  s_lshl_b32 s28, s28, 2")
    A("  s_bfe_u32 s29, s2, 0x10003")
    A("  s_lshl_b32 s29, s29, 1")
    A("  s_or_b32 s28, s28, s29")
    A("  s_bfe_u32 s29, s2, 0x10002")
    A("  s_or_b32 s28, s28, s29                  ; hp")
    A("  s_lshr_b32 s29, s2, 4                   ; split")
    A("  s_lshl_b32 s31, s28, 4")
    A("  s_add_u32 s31, s31, s29")
    A("  s_getreg_b32 s38, hwreg(HW_REG_XCC_ID)")
    A("  s_and_b32 s38, s38, 15")
    A("  s_lshl_b32 s36, s29, 2")
    A(f"  v_lshlrev_b32 {CNT}, 6, {C}")
    A(f"  v_add_u32 {CNT}, s36, {CNT}")
    A("  s_lshl_b32 s36, s28, 9")
    A(f"  v_and_b32 {T1}, 31, v0")
    A(f"  v_lshlrev_b32 {T1}, 4, {T1}")
    A(f"  v_add_u32 {T1}, s36, {T1}")
    A(f"  v_lshrrev_b32 {T0}, 5, v0")
    A(f"  v_lshlrev_b32 {BASE}, 13, {T0}")
    A(f"  v_add_u32 {BASE}, {BASE}, {T1}")
    A("  s_lshl_b32 s36, s29, 4")
    A(f"  v_lshl_add_u32 {TOK}, {C}, 8, {T0}")
    A(f"  v_add_u32 {TOK}, s36, {TOK}")
    A("  s_lshl_b32 s36, s31, 10")
    A(f"  v_lshlrev_b32 {L16}, 4, {LANE}          ; lane*16")
    A(f"  v_add_u32 {ASLOT}, s36, {L16}")
    A(f"  v_add_u32 {AFAST}, {FAST_OFF}, {ASLOT}")
    A("  s_lshl_b32 s37, s31, 5")
    A(f"  s_add_u32 s37, s37, {ML_OFF}")
    A(f"  v_and_b32 {LRD}, 1, {R}")
    A(f"  v_lshl_add_u32 {AML}, {LRD}, 4, s37")
    A("  s_lshl_b32 s36, s29, 17")
    A(f"  v_add_u32 {OFF[0]}, s36, {BASE}")
    for k in range(4):
        A(f"  v_mov_b32 v{D0+k}, -1")
    A("  s_waitcnt lgkmcnt(0)")
    A("  s_load_dword s32, s[12:13], 0           ; context_len")
    A(f"  global_load_dword {PG}, {CNT}, s[10:11]")
    A(f"  global_load_dwordx4 v[{Q}:{Q+3}], {T1}, s[4:5]")
    for k in range(PF):
        if k:
            A(f"  v_add_u32 {OFF[0]}, {16<<17}, {OFF[0]}")
        A(f"  global_load_dwordx4 v[{VB+4*k}:{VB+4*k+3}], {OFF[0]}, s[6:7]")
    if PF2:
        A("  s_bitcmp0_b32 s2, 2")
        A("  s_cbranch_scc1 L_nopf2")
        for k in range(PF, PF + PF2):
            if k:
                A(f"  v_add_u32 {OFF[0]}, {16<<17}, {OFF[0]}")
            A(f"  global_load_dwordx4 v[{VB+4*k}:{VB+4*k+3}], {OFF[0]}, s[6:7]")
        A("L_nopf2:")
    A("  s_cmp_lg_u32 s30, 7")
    A("  s_cbranch_scc1 L_noclear")
    A(f"  global_store_dwordx4 {ASLOT}, v[{D0}:{D0+3}], s[18:19] sc1")
    A(f"  global_store_dwordx4 {AML}, v[{D0}:{D0+3}], s[18:19] sc1")
    A(f"  global_store_dwordx4 {AFAST}, v[{D0}:{D0+3}], s[18:19]")
    A("L_noclear:")
    A("  s_mov_b32 s20, s6")
    A("  s_and_b32 s21, s7, 0xffff")
    A("  s_mov_b32 s22, 34078720")
    A("  s_mov_b32 s23, 0x00020000")
    A("  s_mov_b32 s24, s8")
    A("  s_and_b32 s25, s9, 0xffff")
    A("  s_mov_b32 s26, 34078720")
    A("  s_mov_b32 s27, 0x00020000")
    A("  s_mov_b32 s35, 0x3e0293ee               ; log2(e)/sqrt(128)")
    A(f"  v_and_b32 {T0}, 1, {C}")
    A(f"  v_mov_b32 {LWR}, 0xffff")
    A(f"  v_lshlrev_b32 {LMX}, 4, {T0}")
    A(f"  v_lshlrev_b32 {LWR}, {LMX}, {LWR}")
    A(f"  v_cmp_eq_u32_e64 s[42:43], 1, {T0}")
    A(f"  v_lshrrev_b32 {T0}, 3, {C}")
    A(f"  v_cmp_eq_u32 vcc, {T0}, {LRD}")
    A(f"  v_and_b32 {T0}, 2, {C}")
    A(f"  v_cmp_eq_u32_e64 s[40:41], 2, {T0}")
    A(f"  v_cndmask_b32 {LWR}, 0, {LWR}, vcc")
    A(f"  v_lshlrev_b32 {LRD}, 6, {LRD}")
    A(f"  v_lshrrev_b32 {T0}, 5, v0")
    A(f"  v_cndmask_b32_e64 {M0}, {LWR}, 0, s[40:41]")
    A(f"  v_cndmask_b32_e64 {M1}, 0, {LWR}, s[40:41]")
    A(f"  v_lshl_add_u32 {LMX}, {T0}, 2, {LRD}")
    A("  s_lshl_b32 s36, s30, 10")
    A(f"  v_add_u32 {LWR}, s36, {L16}             ; w*1024+lane*16")
    A("  s_lshl_b32 s36, s28, 4")
    A(f"  v_mov_b32 {ACNT}, s36")
    A(f"  v_mov_b32 {T0}, 1")
    if PF2:
        A("  s_bitcmp0_b32 s2, 2")
        A("  s_cbranch_scc1 L_wpf")
        A(f"  s_waitcnt vmcnt({PF+PF2}) lgkmcnt(0)")
        A("  s_branch L_wpf2")
        A("L_wpf:")
        A(f"  s_waitcnt vmcnt({PF}) lgkmcnt(0)")
        A("L_wpf2:")
    else:
        A(f"  s_waitcnt vmcnt({PF}) lgkmcnt(0)")
    A("  s_cmp_lg_u32 s30, 7")
    A("  s_cbranch_scc1 L_noflag")
    A("  s_waitcnt vmcnt(0)")
    A("  s_mov_b64 exec, 1")
    A(f"  global_atomic_add {ACNT}, {T0}, s[16:17] sc1")
    A("  s_mov_b64 exec, -1")
    A("L_noflag:")
    stamp(2)
    A("  s_cmp_lt_i32 s32, 1")
    A("  s_cselect_b32 s33, 4096, s32")
    A("  s_cselect_b32 s34, 0, 0xf149f2ca")
    A("  s_min_u32 s33, s33, 4096")
    A(f"  v_lshlrev_b32 {PG}, 17, {PG}")
    A(f"  v_cmp_gt_u32 vcc, s33, {TOK}")
    A(f"  v_cmp_gt_i32_e64 s[44:45], s32, {TOK}")
    A(f"  v_mov_b32 {FILL}, s34")
    A(f"  v_cndmask_b32 {PG}, 0x40000000, {PG}, vcc")
    A("  s_nop 1")
    REC = 28
    TT = f"v{G[0]}"

    class Q_:
        def __init__(self): self.ops = []
        def issue(self, name): self.ops.append(name)
        def wait(self, name):
            n = len(self.ops) - 1 - self.ops.index(name)
            A(f"  s_waitcnt vmcnt({n})")
        def copy(self):
            c = Q_(); c.ops = list(self.ops); return c

    def ld(q, j):
        n = j % NL
        base, srd = (KB, "s[20:23]") if j < NL else (VB, "s[24:27]")
        A(f"  v_add_u32_dpp {OFF[j%2]}, {PG}, {BASE} row_newbcast:{bitrev4(n)} {DPP}")
        A(f"  buffer_load_dwordx4 v[{base+4*n}:{base+4*n+3}], {OFF[j%2]}, {srd}, 0 offen nt")
        q.issue(j)

    def scores(g):
        for j in range(4):
            for a in range(4):
                i = 4 * g + a
                c = "0" if j == 0 else f"v{SA+a}"
                A(f"  v_dot2_f32_bf16 v{SA+a}, v{KB+4*i+j}, v{Q+j}, {c}")
        A(f"  v_add_f32_dpp {SP}, v{SA}, v{SA} row_ror:8 row_mask:0xf bank_mask:0x3")
        A(f"  v_add_f32_dpp {SP}, v{SA+1}, v{SA+1} row_ror:8 row_mask:0xf bank_mask:0xc")
        A(f"  v_add_f32_dpp {SQ}, v{SA+2}, v{SA+2} row_ror:8 row_mask:0xf bank_mask:0x3")
        A(f"  v_add_f32_dpp {SQ}, v{SA+3}, v{SA+3} row_ror:8 row_mask:0xf bank_mask:0xc")
        A(f"  v_add_f32_dpp v{G[g]}, {SP}, {SP} row_ror:12 row_mask:0xf bank_mask:0x5")
        A("  s_nop 0")
        A(f"  v_add_f32_dpp v{G[g]}, {SQ}, {SQ} row_ror:4 row_mask:0xf bank_mask:0xa")
        if g in (1, 3):
            a, b = G[g - 1], G[g]
            A(f"  v_cndmask_b32_e64 {TX}, v{b}, v{a}, s[40:41]")
            A(f"  v_cndmask_b32_e64 v{a}, v{a}, v{b}, s[40:41]")
            A("  s_nop 0")
            A(f"  v_add_f32_dpp v{a}, {TX}, v{a} quad_perm:[2,3,0,1] {DPP}")

    def softmax(tag):
        A(f"  v_cndmask_b32_e64 {TX}, v{G[2]}, v{G[0]}, s[42:43]")
        A(f"  v_cndmask_b32_e64 {TT}, v{G[0]}, v{G[2]}, s[42:43]")
        A("  s_nop 0")
        A(f"  v_add_f32_dpp {TT}, {TX}, {TT} quad_perm:[1,0,3,2] {DPP}")
        A(f"  v_mul_f32 {TT}, s35, {TT}")
        A(f"  v_cndmask_b32_e64 {TT}, {FILL}, {TT}, s[44:45]")
        A("  s_nop 1")
        A(f"  v_max_f32_dpp {T0}, {TT}, {TT} row_ror:8 {DPP}")
        for sh in (4, 2, 1):
            A("  s_nop 1")
            A(f"  v_max_f32_dpp {T0}, {T0}, {T0} row_ror:{sh} {DPP}")
        stamp(4)
        A(f"  ds_write_b32 {LMX}, {T0} offset:{LDS_MAX}")
        A("  s_waitcnt lgkmcnt(0)")
        A("  s_barrier")
        stamp(3)
        for k in range(4):
            A(f"  ds_read_b128 v[{KB+4*k}:{KB+4*k+3}], {LRD} offset:{LDS_MAX+16*k}")
        for k in range(4):
            A(f"  s_waitcnt lgkmcnt({3-k})")
            A(f"  v_max3_f32 {T0}, {T0}, v{KB+4*k}, v{KB+1+4*k}")
            A(f"  v_max3_f32 {T0}, {T0}, v{KB+4*k+2}, v{KB+3+4*k}")
        A(f"  v_sub_f32 {TT}, {TT}, {T0}")
        A(f"  v_exp_f32 {TT}, {TT}")
        A("  s_nop 0")
        A(f"  v_cvt_pk_bf16_f32 {PH}, {TT}, {TT}")
        A(f"  v_add_f32_dpp {T1}, {TT}, {TT} row_ror:8 {DPP}")
        A(f"  v_and_b32 {PL}, 0xffff0000, {PH}")
        A(f"  v_sub_f32 {PL}, {TT}, {PL}")
        A(f"  v_add_f32_dpp {T1}, {T1}, {T1} row_ror:4 {DPP}")
        A(f"  v_cvt_pk_bf16_f32 {PL}, {PL}, {PL}")
        A("  s_nop 0")
        A(f"  v_add_f32_dpp {T1}, {T1}, {T1} row_ror:2 {DPP}")
        A("  s_nop 1")
        A(f"  v_add_f32_dpp {T1}, {T1}, {T1} row_ror:1 {DPP}")
        A(f"  ds_write_b32 {LMX}, {T1} offset:{LDS_L}")
        A("  s_waitcnt lgkmcnt(0)")
        A("  s_barrier")
        stamp(1)
        A("  s_cmp_lg_u32 s30, 0")
        A(f"  s_cbranch_scc1 L_noml{tag}")
        for k in range(4):
            A(f"  ds_read_b128 v[{KB+4*k}:{KB+3+4*k}], {LRD} offset:{LDS_L+16*k}")
        A("  s_waitcnt lgkmcnt(0)")
        for k in range(4):
            A(f"  v_pk_add_f32 v[{KB+4*k}:{KB+4*k+1}], v[{KB+4*k}:{KB+4*k+1}], v[{KB+4*k+2}:{KB+4*k+3}]")
        A(f"  v_pk_add_f32 v[{KB}:{KB+1}], v[{KB}:{KB+1}], v[{KB+4}:{KB+5}]")
        A(f"  v_pk_add_f32 v[{KB+8}:{KB+9}], v[{KB+8}:{KB+9}], v[{KB+12}:{KB+13}]")
        A(f"  v_pk_add_f32 v[{KB}:{KB+1}], v[{KB}:{KB+1}], v[{KB+8}:{KB+9}]")
        A(f"  v_add_f32 v{Q+1}, v{KB}, v{KB+1}")
        A(f"  v_min_u32 v{Q}, -2, {T0}")
        A(f"  v_min_u32 v{Q+1}, -2, v{Q+1}")
        A(f"  v_mov_b32 v{Q+2}, s38")
        A(f"  global_store_dwordx3 {AML}, v[{Q}:{Q+2}], s[18:19] sc1")
        A("  s_lshl_b32 s36, s31, 10")
        A(f"  v_lshrrev_b32 {T0}, 1, {R}")
        A(f"  v_lshlrev_b32 {ASLOT}, 9, {T0}")
        A(f"  v_lshl_add_u32 {ASLOT}, {C}, 5, {ASLOT}")
        A(f"  v_and_b32 {T0}, 1, {R}")
        A(f"  v_lshl_add_u32 {ASLOT}, {T0}, 4, {ASLOT}")
        A(f"  v_add_u32 {ASLOT}, s36, {ASLOT}")
        A(f"  v_add_u32 {AFAST}, {FAST_OFF}, {ASLOT}")
        A(f"L_noml{tag}:")

    def w1_addresses():
        A("  s_lshl_b32 s36, s28, 14")
        A("  s_lshl_b32 s37, s29, 6")
        A("  s_add_u32 s36, s36, s37")
        A(f"  v_lshlrev_b32 {ASLOT}, 12, {R}")
        A(f"  v_lshl_add_u32 {ASLOT}, {C}, 2, {ASLOT}")
        A(f"  v_add_u32 {ASLOT}, s36, {ASLOT}")
        A("  s_lshl_b32 s36, s28, 9")
        A("  s_lshr_b32 s37, s29, 3")
        A("  s_lshl_b32 s37, s37, 4")
        A("  s_add_u32 s36, s36, s37")
        A(f"  s_add_u32 s36, s36, {ML_OFF}")
        A(f"  v_and_b32 {T0}, 3, {C}")
        A(f"  v_lshl_add_u32 {T0}, {R}, 2, {T0}")
        A(f"  v_lshlrev_b32 {AML}, 5, {T0}")
        A(f"  v_add_u32 {AML}, s36, {AML}")

    def pv(q, nxt, win, w1):
        CNT_AT = NL + 12 if not win else NL + 9
        ml_done = False
        def issue_next():
            nonlocal nxt
            if w1 and nxt == CNT_AT:
                A(f"  global_load_dword {CNT}, {ACNT}, s[16:17] sc1")
                q.issue("cnt")
            ld(q, nxt); nxt += 1
        if not win:
            while nxt < 2 * NL:
                issue_next()
        if w1:
            w1_addresses()
            stamp(5)
        for i in range(NL):
            lam = bitrev4(i)
            ab = KB + 2 * (i % 4)
            for w, M in enumerate((M0, M1)):
                A(f"  v_and_b32_dpp v{ab+w}, {PH}, {M} row_newbcast:{lam} row_mask:0xf bank_mask:0x5")
                A(f"  v_and_b32_dpp v{ab+w}, {PL}, {M} row_newbcast:{lam} row_mask:0xf bank_mask:0xa")
            q.wait(NL + i)
            did = False
            while win and nxt < 2 * NL and nxt - (NL + i + 1) < win:
                issue_next(); did = True
            if not did:
                A("  s_nop 0")
            c0 = "0" if i == 0 else f"v[{D0}:{D0+3}]"
            c1 = "0" if i == 0 else f"v[{D1}:{D1+3}]"
            A(f"  v_mfma_f32_16x16x16_bf16 v[{D0}:{D0+3}], v[{ab}:{ab+1}], v[{VB+4*i}:{VB+4*i+1}], {c0}")
            A(f"  v_mfma_f32_16x16x16_bf16 v[{D1}:{D1+3}], v[{ab}:{ab+1}], v[{VB+4*i+2}:{VB+4*i+3}], {c1}")
            if w1 and i == 12:
                assert NL + i >= CNT_AT
                A(f"  global_load_dwordx3 v[{REC}:{REC+2}], {AML}, s[18:19] sc1")
                q.issue("ml")

    def path(tag, win):
        q = Q_()
        if not win:
            for j in range(NL):
                ld(q, j)
            A("  s_barrier")
            nxt = NL
            while nxt < NL + vfirst:
                ld(q, nxt); nxt += 1
            for g in range(4):
                q.wait(4 * g + 3)
                scores(g)
        else:
            nxt = 0
            while nxt < win:
                ld(q, nxt); nxt += 1
            A("  s_barrier")
            for j in range(NL):
                q.wait(j)
                ld(q, nxt); nxt += 1
                if j == NL - 1:
                    for _ in range(WX):
                        ld(q, nxt); nxt += 1
                if j % 4 == 3:
                    scores(j // 4)
        softmax(tag)
        A("  s_cmp_lg_u32 s30, 1")
        A(f"  s_cbranch_scc1 L_pv{tag}")
        pv(q.copy(), nxt, win, True)
        A("  s_branch L_pvdone")
        A(f"L_pv{tag}:")
        pv(q.copy(), nxt, win, False)

    if W:
        A(f"  s_mov_b32 s36, {wmask}")
        A("  s_and_b32 s37, s2, 7")
        A("  s_bitcmp1_b32 s36, s37")
        A("  s_cbranch_scc0 L_pathB")
        A("  s_cmp_eq_u32 s30, 7")
        A("  s_cbranch_scc1 L_pathC" if W2 else "  s_cbranch_scc1 L_pathB")
        path("A", W)
        A("  s_branch L_pvdone")
        A("L_pathB:")
        if W2:
            A("  s_cmp_eq_u32 s30, 7")
            A("  s_cbranch_scc1 L_pathC")
            path("B", W2)
            A("  s_branch L_pvdone")
            A("L_pathC:")
            path("C", 0)
        else:
            path("B", 0)
    else:
        path("B", 0)
    A("L_pvdone:")
    stamp(6)
    A("  s_nop 7")
    for k in range(4):
        A(f"  v_permlane16_swap_b32 v{D0+k}, v{D1+k}")
    A(f"  v_pk_add_f32 v[{D0}:{D0+1}], v[{D0}:{D0+1}], v[{D1}:{D1+1}]")
    A(f"  v_pk_add_f32 v[{D0+2}:{D0+3}], v[{D0+2}:{D0+3}], v[{D1+2}:{D1+3}]")
    A(f"  ds_write_b128 {LWR}, v[{D0}:{D0+3}] offset:{LDS_ACC}")
    A("  s_waitcnt lgkmcnt(0)")
    A("  s_barrier")
    A("  s_cmp_gt_u32 s30, 1")
    A("  s_cbranch_scc1 L_end")
    A("  s_cmp_eq_u32 s30, 1")
    A("  s_cbranch_scc1 L_cons")
    for k in range(1, NW):
        A(f"  ds_read_b128 v[{KB+4*k}:{KB+4*k+3}], {L16} offset:{LDS_ACC+1024*k}")
    for k in range(1, NW):
        A(f"  s_waitcnt lgkmcnt({NW-1-k})")
        A(f"  v_pk_add_f32 v[{D0}:{D0+1}], v[{D0}:{D0+1}], v[{KB+4*k}:{KB+4*k+1}]")
        A(f"  v_pk_add_f32 v[{D0+2}:{D0+3}], v[{D0+2}:{D0+3}], v[{KB+4*k+2}:{KB+4*k+3}]")
    for j in range(4):
        A(f"  v_min_u32 v{D0+j}, -2, v{D0+j}")
    A(f"  global_store_dwordx4 {AFAST}, v[{D0}:{D0+3}], s[18:19]")
    A(f"  global_store_dwordx4 {ASLOT}, v[{D0}:{D0+3}], s[18:19] sc1")
    if stamps:
        A("  s_memrealtime s[96:97]")
        A("  s_waitcnt vmcnt(0)")
        A("  s_memrealtime s[98:99]")
        A("  s_waitcnt lgkmcnt(0)")
        A("  s_lshl_b32 s36, s2, 6")
        A(f"  s_add_u32 s36, s36, {128<<20}")
        A("  v_mov_b32 v7, s36")
        A("  v_mov_b32 v8, s96")
        A("  global_store_dword v7, v8, s[18:19] offset:40")
        A("  v_mov_b32 v8, s98")
        A("  global_store_dword v7, v8, s[18:19] offset:44")
    A("  s_endpgm")
    A("L_cons:")
    stamp(9)
    GA = KB
    GV = KB + 4
    WM, WL = f"v{REC}", f"v{REC+1}"

    def issue():
        for m in range(4):
            A(f"  global_load_dword v{GV+m}, v{GA+m}, s[18:19] offset:{m*1024} sc1")
    A("  s_mov_b32 s39, 0x400000")
    A(f"  v_cmp_gt_u32 vcc, {S}, {CNT}")
    A("  s_cbranch_vccz L_cok")
    A("L_cchk:")
    A(f"  global_load_dword {CNT}, {ACNT}, s[16:17] sc1")
    A("  s_sub_u32 s39, s39, 1")
    A("  s_cbranch_scc1 L_end")
    A("  s_waitcnt vmcnt(0)")
    A(f"  v_cmp_gt_u32 vcc, {S}, {CNT}")
    A("  s_cbranch_vccnz L_cchk")
    A("L_mlpoll:")
    A(f"  global_load_dwordx3 v[{REC}:{REC+2}], {AML}, s[18:19] sc1")
    A("  s_sub_u32 s39, s39, 1")
    A("  s_cbranch_scc1 L_end")
    A("L_cok:")
    A("  s_waitcnt vmcnt(0)")
    A(f"  v_max3_u32 {T0}, v{REC}, v{REC+1}, v{REC+2}")
    A(f"  v_cmp_eq_u32 vcc, -1, {T0}")
    A("  s_cbranch_vccnz L_mlpoll")
    A(f"  v_cmp_eq_u32 vcc, s38, v{REC+2}")
    A(f"  v_mov_b32 {T1}, {FAST_OFF}")
    A(f"  v_mov_b32 {T0}, {WM}")
    if "slowonly" in exp:
        A(f"  v_mov_b32 v{REC+2}, 0")
    else:
        A(f"  v_cndmask_b32 v{REC+2}, 0, {T1}, vcc")
    A("  s_nop 1")
    for m in range(4):
        A(f"  v_add_u32_dpp v{GA+m}, v{REC+2}, {ASLOT} row_newbcast:{m} {DPP}")
    issue()

    def allred(op, reg, tmp):
        for sh in (2, 1):
            A("  s_nop 1")
            A(f"  {op}_dpp {reg}, {reg}, {reg} row_ror:{sh} {DPP}")
        A(f"  v_mov_b32 {tmp}, {reg}")
        A("  s_nop 1")
        A(f"  v_permlane16_swap_b32 {reg}, {tmp}")
        A("  s_nop 1")
        A(f"  {op} {reg}, {reg}, {tmp}")
        A(f"  v_mov_b32 {tmp}, {reg}")
        A("  s_nop 1")
        A(f"  v_permlane32_swap_b32 {reg}, {tmp}")
        A("  s_nop 1")
        A(f"  {op} {reg}, {reg}, {tmp}")
    allred("v_max_f32", T0, T1)
    A(f"  v_sub_f32 {WM}, {WM}, {T0}")
    A(f"  v_exp_f32 {WM}, {WM}")
    A("  s_nop 0")
    A(f"  v_mul_f32 {WL}, {WM}, {WL}")
    allred("v_add_f32", WL, T1)
    A(f"  v_rcp_f32 {WL}, {WL}")
    A("  s_lshl_b32 s36, s31, 5")
    A(f"  v_lshlrev_b32 v{Q}, 1, {C}")
    A(f"  v_mul_f32 {WM}, {WM}, {WL}")
    A(f"  v_add_u32 v{Q}, s36, v{Q}")
    A("  s_branch L_chk")
    A("L_poll:")
    issue()
    A("  s_sub_u32 s39, s39, 1")
    A("  s_cbranch_scc1 L_end")
    A("L_chk:")
    A("  s_waitcnt vmcnt(0)")
    A(f"  v_max3_u32 {T0}, v{GV}, v{GV+1}, v{GV+2}")
    A(f"  v_max_u32 {T0}, {T0}, v{GV+3}")
    A(f"  v_cmp_eq_u32 vcc, -1, {T0}")
    A("  s_cbranch_vccnz L_poll")
    A(f"  v_mul_f32_dpp v{D0}, {WM}, v{GV} row_newbcast:0 {DPP}")
    for m in range(1, 4):
        A(f"  v_fmac_f32_dpp v{D0}, {WM}, v{GV+m} row_newbcast:{m} {DPP}")
    stamp(7)
    A(f"  v_mov_b32 v{D0+1}, v{D0}")
    A("  s_nop 1")
    A(f"  v_permlane16_swap_b32 v{D0}, v{D0+1}")
    A("  s_nop 1")
    A(f"  v_add_f32 v{D0}, v{D0}, v{D0+1}")
    A(f"  v_mov_b32 v{D0+1}, v{D0}")
    A("  s_nop 1")
    A(f"  v_permlane32_swap_b32 v{D0}, v{D0+1}")
    A("  s_nop 1")
    A(f"  v_add_f32 v{D0}, v{D0}, v{D0+1}")
    A(f"  v_cvt_pk_bf16_f32 v{D0}, v{D0}, v{D0}")
    A("  s_mov_b64 exec, 0xffff")
    A(f"  global_store_short v{Q}, v{D0}, s[14:15]")
    if stamps:
        write_stamps()
    A("L_end:")
    A("  s_endpgm")
    A('.section .rodata,"a"')
    A(".p2align 6")
    A(f".amdhsa_kernel {NAME}_kernel")
    A(f"  .amdhsa_next_free_vgpr {NVGPR}")
    A(f"  .amdhsa_next_free_sgpr {102 if stamps else 48}")
    A(f"  .amdhsa_accum_offset {(NVGPR+3)//4*4}")
    A("  .amdhsa_group_segment_fixed_size 0")
    A("  .amdhsa_kernarg_size 64")
    A("  .amdhsa_user_sgpr_count 2")
    A("  .amdhsa_user_sgpr_kernarg_segment_ptr 1")
    A("  .amdhsa_system_sgpr_workgroup_id_x 1")
    A("  .amdhsa_float_denorm_mode_32 3")
    A(".end_amdhsa_kernel")
    return "\n".join(o) + "\n"


if __name__ == "__main__":
    ap = argparse.ArgumentParser()
    ap.add_argument("-o", default="cdna_kernels/" + NAME + ".s")
    ap.add_argument("--stamps", action="store_true")
    ap.add_argument("--vfirst", type=int, default=4)
    ap.add_argument("--PF", type=int, default=2)
    ap.add_argument("--exp", default="")
    ap.add_argument("--PF2", type=int, default=0)
    ap.add_argument("--W", type=int, default=3)
    ap.add_argument("--WX", type=int, default=2)
    ap.add_argument("--wmask", type=lambda x: int(x, 0), default=0x55)
    ap.add_argument("--W2", type=int, default=0)
    a = ap.parse_args()
    open(a.o, "w").write(gen(a.stamps, a.vfirst, a.PF, a.exp, a.PF2, a.W, a.WX, a.wmask, a.W2))
```

```python
import argparse
from gen import HEADER, NAME


def bitrev4(n):
    return ((n & 1) << 3) | ((n & 2) << 1) | ((n & 4) >> 1) | ((n & 8) >> 3)


def gen(stamps=False, vfirst=4, PF=2, exp="", PF2=0, CPF=False):
    S = 16; NW = 8; NL = 16; NWG = 256
    LDS_ACC = 0
    LDS_MAX = NW * 1024
    LDS_L = LDS_MAX + 128
    LDS_BYTES = LDS_L + 128
    ML_OFF = 0x40000
    FAST_OFF = 0x80000
    LANE, C, R, TOK, BASE, PG, T0 = "v1", "v2", "v3", "v4", "v5", "v6", "v7"
    Q = 8
    M0, M1, PH, PL, LRD, FILL, CNT, T1 = "v12", "v13", "v14", "v15", "v16", "v17", "v18", "v19"
    D0, D1 = 20, 24
    SA = 20
    SP, SQ = "v24", "v25"
    G = [26, 27, 28, 29]
    TX = "v30"
    OFF = ["v31", "v32"]
    AFAST, ASLOT, AML, ACNT, LWR, L16, LMX = "v33", "v34", "v35", "v36", "v37", "v38", "v39"
    KB = 40; VB = KB + 4 * NL
    NVGPR = VB + 4 * NL
    assert NVGPR == 168
    DPP = "row_mask:0xf bank_mask:0xf"
    o = []
    A = o.append

    def stamp(k):
        if stamps:
            A(f"  s_memrealtime s[{80+2*k}:{81+2*k}]")

    def write_stamps(n=10):
        A("  s_memrealtime s[96:97]")
        A("  s_waitcnt lgkmcnt(0)")
        A("  s_lshl_b32 s36, s2, 6")
        A(f"  s_add_u32 s36, s36, {128<<20}")
        A("  v_mov_b32 v7, s36")
        for k in range(n):
            A(f"  v_mov_b32 v8, s{80+2*k}")
            A(f"  global_store_dword v7, v8, s[18:19] offset:{4*k}")

    A(HEADER.rstrip("\n"))
    A(f"; @launch grid=({NWG},1,1) block=({64*NW},1,1) lds={LDS_BYTES}")
    A('.amdgcn_target "amdgcn-amd-amdhsa--gfx950"')
    A(".text")
    A(f".globl {NAME}_kernel")
    A(".p2align 8")
    A(f".type {NAME}_kernel,@function")
    A(f"{NAME}_kernel:")
    A(f"  s_cmp_ge_u32 s2, {NWG}")
    A("  s_cbranch_scc1 L_end")
    A("  s_load_dwordx16 s[4:19], s[0:1], 0")
    stamp(0)
    if CPF:
        A("  s_getpc_b64 s[46:47]")
        A("L_pc:")
        A(f"  v_lshlrev_b32 {T0}, 4, v0")
        A(f"  v_min_u32 {T0}, L_codeend-L_pc-16, {T0}")
        A(f"  global_load_dwordx4 v[{VB+60}:{VB+63}], {T0}, s[46:47]")
    A(f"  v_lshrrev_b32 {T0}, 6, v0")
    A(f"  v_and_b32 {C}, 15, v0")
    A(f"  v_readfirstlane_b32 s30, {T0}          ; w")
    A(f"  v_bfe_u32 {R}, v0, 4, 2")
    A(f"  v_and_b32 {LANE}, 63, v0")
    A("  s_and_b32 s28, s2, 3")
    A("  s_lshl_b32 s28, s28, 2")
    A("  s_bfe_u32 s29, s2, 0x10003")
    A("  s_lshl_b32 s29, s29, 1")
    A("  s_or_b32 s28, s28, s29")
    A("  s_bfe_u32 s29, s2, 0x10002")
    A("  s_or_b32 s28, s28, s29                  ; hp")
    A("  s_lshr_b32 s29, s2, 4                   ; split")
    A("  s_lshl_b32 s31, s28, 4")
    A("  s_add_u32 s31, s31, s29")
    A("  s_getreg_b32 s38, hwreg(HW_REG_XCC_ID)")
    A("  s_and_b32 s38, s38, 15")
    A("  s_lshl_b32 s36, s29, 2")
    A(f"  v_lshlrev_b32 {CNT}, 6, {C}")
    A(f"  v_add_u32 {CNT}, s36, {CNT}")
    A("  s_lshl_b32 s36, s28, 9")
    A(f"  v_and_b32 {T1}, 31, v0")
    A(f"  v_lshlrev_b32 {T1}, 4, {T1}")
    A(f"  v_add_u32 {T1}, s36, {T1}")
    A(f"  v_lshrrev_b32 {T0}, 5, v0")
    A(f"  v_lshlrev_b32 {BASE}, 13, {T0}")
    A(f"  v_add_u32 {BASE}, {BASE}, {T1}")
    A("  s_lshl_b32 s36, s29, 4")
    A(f"  v_lshl_add_u32 {TOK}, {C}, 8, {T0}")
    A(f"  v_add_u32 {TOK}, s36, {TOK}")
    A("  s_lshl_b32 s36, s31, 10")
    A(f"  v_lshlrev_b32 {L16}, 4, {LANE}          ; lane*16")
    A(f"  v_add_u32 {ASLOT}, s36, {L16}")
    A(f"  v_add_u32 {AFAST}, {FAST_OFF}, {ASLOT}")
    A("  s_lshl_b32 s37, s31, 5")
    A(f"  s_add_u32 s37, s37, {ML_OFF}")
    A(f"  v_and_b32 {LRD}, 1, {R}")
    A(f"  v_lshl_add_u32 {AML}, {LRD}, 4, s37")
    A("  s_lshl_b32 s36, s29, 17")
    A(f"  v_add_u32 {OFF[0]}, s36, {BASE}")
    for k in range(4):
        A(f"  v_mov_b32 v{D0+k}, -1")
    A("  s_waitcnt lgkmcnt(0)")
    A("  s_load_dword s32, s[12:13], 0           ; context_len")
    A(f"  global_load_dword {PG}, {CNT}, s[10:11]")
    for k in range(PF):
        if k:
            A(f"  v_add_u32 {OFF[0]}, {16<<17}, {OFF[0]}")
        A(f"  global_load_dwordx4 v[{VB+4*k}:{VB+4*k+3}], {OFF[0]}, s[6:7]")
    if PF2:
        A("  s_bitcmp0_b32 s2, 2")
        A("  s_cbranch_scc1 L_nopf2")
        for k in range(PF, PF + PF2):
            if k:
                A(f"  v_add_u32 {OFF[0]}, {16<<17}, {OFF[0]}")
            A(f"  global_load_dwordx4 v[{VB+4*k}:{VB+4*k+3}], {OFF[0]}, s[6:7]")
        A("L_nopf2:")
    A(f"  global_load_dwordx4 v[{Q}:{Q+3}], {T1}, s[4:5]")
    A("  s_cmp_lg_u32 s30, 7")
    A("  s_cbranch_scc1 L_noclear")
    A(f"  global_store_dwordx4 {ASLOT}, v[{D0}:{D0+3}], s[18:19] sc1")
    A(f"  global_store_dwordx4 {AML}, v[{D0}:{D0+3}], s[18:19] sc1")
    A(f"  global_store_dwordx4 {AFAST}, v[{D0}:{D0+3}], s[18:19]")
    A("L_noclear:")
    A("  s_mov_b32 s20, s6")
    A("  s_and_b32 s21, s7, 0xffff")
    A("  s_mov_b32 s22, 34078720")
    A("  s_mov_b32 s23, 0x00020000")
    A("  s_mov_b32 s24, s8")
    A("  s_and_b32 s25, s9, 0xffff")
    A("  s_mov_b32 s26, 34078720")
    A("  s_mov_b32 s27, 0x00020000")
    A("  s_mov_b32 s35, 0x3e0293ee               ; log2(e)/sqrt(128)")
    A(f"  v_and_b32 {T0}, 1, {C}")
    A(f"  v_mov_b32 {LWR}, 0xffff")
    A(f"  v_lshlrev_b32 {LMX}, 4, {T0}")
    A(f"  v_lshlrev_b32 {LWR}, {LMX}, {LWR}")
    A(f"  v_cmp_eq_u32_e64 s[42:43], 1, {T0}")
    A(f"  v_lshrrev_b32 {T0}, 3, {C}")
    A(f"  v_cmp_eq_u32 vcc, {T0}, {LRD}")
    A(f"  v_and_b32 {T0}, 2, {C}")
    A(f"  v_cmp_eq_u32_e64 s[40:41], 2, {T0}")
    A(f"  v_cndmask_b32 {LWR}, 0, {LWR}, vcc")
    A(f"  v_lshlrev_b32 {LRD}, 6, {LRD}")
    A(f"  v_lshrrev_b32 {T0}, 5, v0")
    A(f"  v_cndmask_b32_e64 {M0}, {LWR}, 0, s[40:41]")
    A(f"  v_cndmask_b32_e64 {M1}, 0, {LWR}, s[40:41]")
    A(f"  v_lshl_add_u32 {LMX}, {T0}, 2, {LRD}")
    A("  s_lshl_b32 s36, s30, 10")
    A(f"  v_add_u32 {LWR}, s36, {L16}             ; w*1024+lane*16")
    A("  s_lshl_b32 s36, s28, 4")
    A(f"  v_mov_b32 {ACNT}, s36")
    A(f"  v_mov_b32 {T0}, 1")
    if PF2:
        A("  s_bitcmp0_b32 s2, 2")
        A("  s_cbranch_scc1 L_wpf")
        A(f"  s_waitcnt vmcnt({PF+PF2+1}) lgkmcnt(0)")
        A("  s_branch L_wpf2")
        A("L_wpf:")
        A(f"  s_waitcnt vmcnt({PF+1}) lgkmcnt(0)")
        A("L_wpf2:")
    else:
        A(f"  s_waitcnt vmcnt({PF+1}) lgkmcnt(0)")
    A("  s_cmp_lg_u32 s30, 7")
    A("  s_cbranch_scc1 L_noflag")
    A("  s_waitcnt vmcnt(0)")
    A("  s_mov_b64 exec, 1")
    A(f"  global_atomic_add {ACNT}, {T0}, s[16:17] sc1")
    A("  s_mov_b64 exec, -1")
    A("L_noflag:")
    stamp(2)
    A("  s_cmp_lt_i32 s32, 1")
    A("  s_cselect_b32 s33, 4096, s32")
    A("  s_cselect_b32 s34, 0, 0xf149f2ca")
    A("  s_min_u32 s33, s33, 4096")
    A(f"  v_lshlrev_b32 {PG}, 17, {PG}")
    A(f"  v_cmp_gt_u32 vcc, s33, {TOK}")
    A(f"  v_cmp_gt_i32_e64 s[44:45], s32, {TOK}")
    A(f"  v_mov_b32 {FILL}, s34")
    A(f"  v_cndmask_b32 {PG}, 0x40000000, {PG}, vcc")
    A("  s_nop 1")
    for n in range(NL):
        A(f"  v_add_u32_dpp {OFF[n%2]}, {PG}, {BASE} row_newbcast:{bitrev4(n)} {DPP}")
        A(f"  buffer_load_dwordx4 v[{KB+4*n}:{KB+4*n+3}], {OFF[n%2]}, s[20:23], 0 offen nt")
    issued = 0

    def issue_v(upto):
        nonlocal issued
        while issued < upto:
            i = issued
            A(f"  v_add_u32_dpp {OFF[i%2]}, {PG}, {BASE} row_newbcast:{bitrev4(i)} {DPP}")
            A(f"  buffer_load_dwordx4 v[{VB+4*i}:{VB+4*i+3}], {OFF[i%2]}, s[24:27], 0 offen nt")
            issued += 1
    A("  s_barrier")
    assert vfirst <= 12
    issue_v(vfirst)
    for g in range(4):
        n = (NL - 4 * g - 4) + issued
        A(f"  s_waitcnt vmcnt({n})")
        for j in range(4):
            for a in range(4):
                i = 4 * g + a
                c = "0" if j == 0 else f"v{SA+a}"
                A(f"  v_dot2_f32_bf16 v{SA+a}, v{KB+4*i+j}, v{Q+j}, {c}")
        A(f"  v_add_f32_dpp {SP}, v{SA}, v{SA} row_ror:8 row_mask:0xf bank_mask:0x3")
        A(f"  v_add_f32_dpp {SP}, v{SA+1}, v{SA+1} row_ror:8 row_mask:0xf bank_mask:0xc")
        A(f"  v_add_f32_dpp {SQ}, v{SA+2}, v{SA+2} row_ror:8 row_mask:0xf bank_mask:0x3")
        A(f"  v_add_f32_dpp {SQ}, v{SA+3}, v{SA+3} row_ror:8 row_mask:0xf bank_mask:0xc")
        A(f"  v_add_f32_dpp v{G[g]}, {SP}, {SP} row_ror:12 row_mask:0xf bank_mask:0x5")
        A("  s_nop 0")
        A(f"  v_add_f32_dpp v{G[g]}, {SQ}, {SQ} row_ror:4 row_mask:0xf bank_mask:0xa")
        if g in (1, 3):
            a, b = G[g - 1], G[g]
            A(f"  v_cndmask_b32_e64 {TX}, v{b}, v{a}, s[40:41]")
            A(f"  v_cndmask_b32_e64 v{a}, v{a}, v{b}, s[40:41]")
            A("  s_nop 0")
            A(f"  v_add_f32_dpp v{a}, {TX}, v{a} quad_perm:[2,3,0,1] {DPP}")
    TT = f"v{G[0]}"
    A(f"  v_cndmask_b32_e64 {TX}, v{G[2]}, v{G[0]}, s[42:43]")
    A(f"  v_cndmask_b32_e64 {TT}, v{G[0]}, v{G[2]}, s[42:43]")
    A("  s_nop 0")
    A(f"  v_add_f32_dpp {TT}, {TX}, {TT} quad_perm:[1,0,3,2] {DPP}")
    A(f"  v_mul_f32 {TT}, s35, {TT}")
    A(f"  v_cndmask_b32_e64 {TT}, {FILL}, {TT}, s[44:45]")
    A("  s_nop 1")
    A(f"  v_max_f32_dpp {T0}, {TT}, {TT} row_ror:8 {DPP}")
    for sh in (4, 2, 1):
        A("  s_nop 1")
        A(f"  v_max_f32_dpp {T0}, {T0}, {T0} row_ror:{sh} {DPP}")
    stamp(4)
    A(f"  ds_write_b32 {LMX}, {T0} offset:{LDS_MAX}")
    A("  s_waitcnt lgkmcnt(0)")
    A("  s_barrier")
    stamp(3)
    for k in range(4):
        A(f"  ds_read_b128 v[{KB+4*k}:{KB+4*k+3}], {LRD} offset:{LDS_MAX+16*k}")
    for k in range(4):
        A(f"  s_waitcnt lgkmcnt({3-k})")
        A(f"  v_max3_f32 {T0}, {T0}, v{KB+4*k}, v{KB+1+4*k}")
        A(f"  v_max3_f32 {T0}, {T0}, v{KB+4*k+2}, v{KB+3+4*k}")
    A(f"  v_sub_f32 {TT}, {TT}, {T0}")
    A(f"  v_exp_f32 {TT}, {TT}")
    A("  s_nop 0")
    A(f"  v_cvt_pk_bf16_f32 {PH}, {TT}, {TT}")
    A(f"  v_add_f32_dpp {T1}, {TT}, {TT} row_ror:8 {DPP}")
    A(f"  v_and_b32 {PL}, 0xffff0000, {PH}")
    A(f"  v_sub_f32 {PL}, {TT}, {PL}")
    A(f"  v_add_f32_dpp {T1}, {T1}, {T1} row_ror:4 {DPP}")
    A(f"  v_cvt_pk_bf16_f32 {PL}, {PL}, {PL}")
    A("  s_nop 0")
    A(f"  v_add_f32_dpp {T1}, {T1}, {T1} row_ror:2 {DPP}")
    A("  s_nop 1")
    A(f"  v_add_f32_dpp {T1}, {T1}, {T1} row_ror:1 {DPP}")
    A(f"  ds_write_b32 {LMX}, {T1} offset:{LDS_L}")
    A("  s_waitcnt lgkmcnt(0)")
    A("  s_barrier")
    stamp(1)
    A("  s_cmp_lg_u32 s30, 0")
    A("  s_cbranch_scc1 L_noml")
    for k in range(4):
        A(f"  ds_read_b128 v[{KB+4*k}:{KB+3+4*k}], {LRD} offset:{LDS_L+16*k}")
    A("  s_waitcnt lgkmcnt(0)")
    for k in range(4):
        A(f"  v_pk_add_f32 v[{KB+4*k}:{KB+4*k+1}], v[{KB+4*k}:{KB+4*k+1}], v[{KB+4*k+2}:{KB+4*k+3}]")
    A(f"  v_pk_add_f32 v[{KB}:{KB+1}], v[{KB}:{KB+1}], v[{KB+4}:{KB+5}]")
    A(f"  v_pk_add_f32 v[{KB+8}:{KB+9}], v[{KB+8}:{KB+9}], v[{KB+12}:{KB+13}]")
    A(f"  v_pk_add_f32 v[{KB}:{KB+1}], v[{KB}:{KB+1}], v[{KB+8}:{KB+9}]")
    A(f"  v_add_f32 v{Q+1}, v{KB}, v{KB+1}")
    A(f"  v_min_u32 v{Q}, -2, {T0}")
    A(f"  v_min_u32 v{Q+1}, -2, v{Q+1}")
    A(f"  v_mov_b32 v{Q+2}, s38")
    A(f"  global_store_dwordx3 {AML}, v[{Q}:{Q+2}], s[18:19] sc1")
    A("L_noml:")
    issue_v(12)
    A("  s_cmp_lg_u32 s30, 1")
    A("  s_cbranch_scc1 L_nocnt")
    A(f"  global_load_dword {CNT}, {ACNT}, s[16:17] sc1")
    A("L_nocnt:")
    issue_v(NL)
    A("  s_cmp_gt_u32 s30, 1")
    A("  s_cbranch_scc1 L_pv")
    A("  s_cmp_eq_u32 s30, 1")
    A("  s_cbranch_scc1 L_w1")
    A("  s_lshl_b32 s36, s31, 10")
    A(f"  v_lshrrev_b32 {T0}, 1, {R}")
    A(f"  v_lshlrev_b32 {ASLOT}, 9, {T0}")
    A(f"  v_lshl_add_u32 {ASLOT}, {C}, 5, {ASLOT}")
    A(f"  v_and_b32 {T0}, 1, {R}")
    A(f"  v_lshl_add_u32 {ASLOT}, {T0}, 4, {ASLOT}")
    A(f"  v_add_u32 {ASLOT}, s36, {ASLOT}")
    A(f"  v_add_u32 {AFAST}, {FAST_OFF}, {ASLOT}")
    A("  s_branch L_pv")
    A("L_w1:")
    A("  s_lshl_b32 s36, s28, 14")
    A("  s_lshl_b32 s37, s29, 6")
    A("  s_add_u32 s36, s36, s37")
    A(f"  v_lshlrev_b32 {ASLOT}, 12, {R}")
    A(f"  v_lshl_add_u32 {ASLOT}, {C}, 2, {ASLOT}")
    A(f"  v_add_u32 {ASLOT}, s36, {ASLOT}")
    A("  s_lshl_b32 s36, s28, 9")
    A("  s_lshr_b32 s37, s29, 3")
    A("  s_lshl_b32 s37, s37, 4")
    A("  s_add_u32 s36, s36, s37")
    A(f"  s_add_u32 s36, s36, {ML_OFF}")
    A(f"  v_and_b32 {T0}, 3, {C}")
    A(f"  v_lshl_add_u32 {T0}, {R}, 2, {T0}")
    A(f"  v_lshlrev_b32 {AML}, 5, {T0}")
    A(f"  v_add_u32 {AML}, s36, {AML}")
    REC = 28

    def pv(w1):
        for i in range(NL):
            n = NL - 1 - i
            if w1 and i != 12:
                n += 1
            lam = bitrev4(i)
            ab = KB + 2 * (i % 4)
            for w, M in enumerate((M0, M1)):
                A(f"  v_and_b32_dpp v{ab+w}, {PH}, {M} row_newbcast:{lam} row_mask:0xf bank_mask:0x5")
                A(f"  v_and_b32_dpp v{ab+w}, {PL}, {M} row_newbcast:{lam} row_mask:0xf bank_mask:0xa")
            A(f"  s_waitcnt vmcnt({n})")
            A("  s_nop 0")
            c0 = "0" if i == 0 else f"v[{D0}:{D0+3}]"
            c1 = "0" if i == 0 else f"v[{D1}:{D1+3}]"
            A(f"  v_mfma_f32_16x16x16_bf16 v[{D0}:{D0+3}], v[{ab}:{ab+1}], v[{VB+4*i}:{VB+4*i+1}], {c0}")
            A(f"  v_mfma_f32_16x16x16_bf16 v[{D1}:{D1+3}], v[{ab}:{ab+1}], v[{VB+4*i+2}:{VB+4*i+3}], {c1}")
            if w1 and i == 12:
                A(f"  global_load_dwordx3 v[{REC}:{REC+2}], {AML}, s[18:19] sc1")
    stamp(5)
    pv(True)
    A("  s_branch L_pvdone")
    A("L_pv:")
    pv(False)
    A("L_pvdone:")
    stamp(6)
    A("  s_nop 7")
    for k in range(4):
        A(f"  v_permlane16_swap_b32 v{D0+k}, v{D1+k}")
    A(f"  v_pk_add_f32 v[{D0}:{D0+1}], v[{D0}:{D0+1}], v[{D1}:{D1+1}]")
    A(f"  v_pk_add_f32 v[{D0+2}:{D0+3}], v[{D0+2}:{D0+3}], v[{D1+2}:{D1+3}]")
    A(f"  ds_write_b128 {LWR}, v[{D0}:{D0+3}] offset:{LDS_ACC}")
    A("  s_waitcnt lgkmcnt(0)")
    A("  s_barrier")
    A("  s_cmp_gt_u32 s30, 1")
    A("  s_cbranch_scc1 L_end")
    A("  s_cmp_eq_u32 s30, 1")
    A("  s_cbranch_scc1 L_cons")
    for k in range(1, NW):
        A(f"  ds_read_b128 v[{KB+4*k}:{KB+4*k+3}], {L16} offset:{LDS_ACC+1024*k}")
    for k in range(1, NW):
        A(f"  s_waitcnt lgkmcnt({NW-1-k})")
        A(f"  v_pk_add_f32 v[{D0}:{D0+1}], v[{D0}:{D0+1}], v[{KB+4*k}:{KB+4*k+1}]")
        A(f"  v_pk_add_f32 v[{D0+2}:{D0+3}], v[{D0+2}:{D0+3}], v[{KB+4*k+2}:{KB+4*k+3}]")
    for j in range(4):
        A(f"  v_min_u32 v{D0+j}, -2, v{D0+j}")
    A(f"  global_store_dwordx4 {AFAST}, v[{D0}:{D0+3}], s[18:19]")
    A(f"  global_store_dwordx4 {ASLOT}, v[{D0}:{D0+3}], s[18:19] sc1")
    if stamps:
        A("  s_memrealtime s[96:97]")
        A("  s_waitcnt vmcnt(0)")
        A("  s_memrealtime s[98:99]")
        A("  s_waitcnt lgkmcnt(0)")
        A("  s_lshl_b32 s36, s2, 6")
        A(f"  s_add_u32 s36, s36, {128<<20}")
        A("  v_mov_b32 v7, s36")
        A("  v_mov_b32 v8, s96")
        A("  global_store_dword v7, v8, s[18:19] offset:40")
        A("  v_mov_b32 v8, s98")
        A("  global_store_dword v7, v8, s[18:19] offset:44")
    A("  s_endpgm")
    A("L_cons:")
    stamp(9)
    GA = KB
    GV = KB + 4
    WM, WL = f"v{REC}", f"v{REC+1}"

    def issue():
        for m in range(4):
            A(f"  global_load_dword v{GV+m}, v{GA+m}, s[18:19] offset:{m*1024} sc1")
    A("  s_mov_b32 s39, 0x400000")
    A(f"  v_cmp_gt_u32 vcc, {S}, {CNT}")
    A("  s_cbranch_vccz L_cok")
    A("L_cchk:")
    A(f"  global_load_dword {CNT}, {ACNT}, s[16:17] sc1")
    A("  s_sub_u32 s39, s39, 1")
    A("  s_cbranch_scc1 L_end")
    A("  s_waitcnt vmcnt(0)")
    A(f"  v_cmp_gt_u32 vcc, {S}, {CNT}")
    A("  s_cbranch_vccnz L_cchk")
    A("L_mlpoll:")
    A(f"  global_load_dwordx3 v[{REC}:{REC+2}], {AML}, s[18:19] sc1")
    A("  s_sub_u32 s39, s39, 1")
    A("  s_cbranch_scc1 L_end")
    A("L_cok:")
    A("  s_waitcnt vmcnt(0)")
    A(f"  v_max3_u32 {T0}, v{REC}, v{REC+1}, v{REC+2}")
    A(f"  v_cmp_eq_u32 vcc, -1, {T0}")
    A("  s_cbranch_vccnz L_mlpoll")
    A(f"  v_cmp_eq_u32 vcc, s38, v{REC+2}")
    A(f"  v_mov_b32 {T1}, {FAST_OFF}")
    A(f"  v_mov_b32 {T0}, {WM}")
    if "slowonly" in exp:
        A(f"  v_mov_b32 v{REC+2}, 0")
    else:
        A(f"  v_cndmask_b32 v{REC+2}, 0, {T1}, vcc")
    A("  s_nop 1")
    for m in range(4):
        A(f"  v_add_u32_dpp v{GA+m}, v{REC+2}, {ASLOT} row_newbcast:{m} {DPP}")
    issue()

    def allred(op, reg, tmp):
        for sh in (2, 1):
            A("  s_nop 1")
            A(f"  {op}_dpp {reg}, {reg}, {reg} row_ror:{sh} {DPP}")
        A(f"  v_mov_b32 {tmp}, {reg}")
        A("  s_nop 1")
        A(f"  v_permlane16_swap_b32 {reg}, {tmp}")
        A("  s_nop 1")
        A(f"  {op} {reg}, {reg}, {tmp}")
        A(f"  v_mov_b32 {tmp}, {reg}")
        A("  s_nop 1")
        A(f"  v_permlane32_swap_b32 {reg}, {tmp}")
        A("  s_nop 1")
        A(f"  {op} {reg}, {reg}, {tmp}")
    allred("v_max_f32", T0, T1)
    A(f"  v_sub_f32 {WM}, {WM}, {T0}")
    A(f"  v_exp_f32 {WM}, {WM}")
    A("  s_nop 0")
    A(f"  v_mul_f32 {WL}, {WM}, {WL}")
    allred("v_add_f32", WL, T1)
    A(f"  v_rcp_f32 {WL}, {WL}")
    A("  s_lshl_b32 s36, s31, 5")
    A(f"  v_lshlrev_b32 v{Q}, 1, {C}")
    A(f"  v_mul_f32 {WM}, {WM}, {WL}")
    A(f"  v_add_u32 v{Q}, s36, v{Q}")
    A("  s_branch L_chk")
    A("L_poll:")
    issue()
    A("  s_sub_u32 s39, s39, 1")
    A("  s_cbranch_scc1 L_end")
    A("L_chk:")
    A("  s_waitcnt vmcnt(0)")
    A(f"  v_max3_u32 {T0}, v{GV}, v{GV+1}, v{GV+2}")
    A(f"  v_max_u32 {T0}, {T0}, v{GV+3}")
    A(f"  v_cmp_eq_u32 vcc, -1, {T0}")
    A("  s_cbranch_vccnz L_poll")
    A(f"  v_mul_f32_dpp v{D0}, {WM}, v{GV} row_newbcast:0 {DPP}")
    for m in range(1, 4):
        A(f"  v_fmac_f32_dpp v{D0}, {WM}, v{GV+m} row_newbcast:{m} {DPP}")
    stamp(7)
    A(f"  v_mov_b32 v{D0+1}, v{D0}")
    A("  s_nop 1")
    A(f"  v_permlane16_swap_b32 v{D0}, v{D0+1}")
    A("  s_nop 1")
    A(f"  v_add_f32 v{D0}, v{D0}, v{D0+1}")
    A(f"  v_mov_b32 v{D0+1}, v{D0}")
    A("  s_nop 1")
    A(f"  v_permlane32_swap_b32 v{D0}, v{D0+1}")
    A("  s_nop 1")
    A(f"  v_add_f32 v{D0}, v{D0}, v{D0+1}")
    A(f"  v_cvt_pk_bf16_f32 v{D0}, v{D0}, v{D0}")
    A("  s_mov_b64 exec, 0xffff")
    A(f"  global_store_short v{Q}, v{D0}, s[14:15]")
    if stamps:
        write_stamps()
    A("L_end:")
    A("  s_endpgm")
    A("L_codeend:")
    A('.section .rodata,"a"')
    A(".p2align 6")
    A(f".amdhsa_kernel {NAME}_kernel")
    A(f"  .amdhsa_next_free_vgpr {NVGPR}")
    A(f"  .amdhsa_next_free_sgpr {102 if stamps else 48}")
    A(f"  .amdhsa_accum_offset {(NVGPR+3)//4*4}")
    A("  .amdhsa_group_segment_fixed_size 0")
    A("  .amdhsa_kernarg_size 64")
    A("  .amdhsa_user_sgpr_count 2")
    A("  .amdhsa_user_sgpr_kernarg_segment_ptr 1")
    A("  .amdhsa_system_sgpr_workgroup_id_x 1")
    A("  .amdhsa_float_denorm_mode_32 3")
    A(".end_amdhsa_kernel")
    return "\n".join(o) + "\n"


if __name__ == "__main__":
    ap = argparse.ArgumentParser()
    ap.add_argument("-o", default="cdna_kernels/" + NAME + ".s")
    ap.add_argument("--stamps", action="store_true")
    ap.add_argument("--vfirst", type=int, default=4)
    ap.add_argument("--PF", type=int, default=2)
    ap.add_argument("--exp", default="")
    ap.add_argument("--PF2", type=int, default=0)
    ap.add_argument("--CPF", action="store_true")
    a = ap.parse_args()
    open(a.o, "w").write(gen(a.stamps, a.vfirst, a.PF, a.exp, a.PF2, a.CPF))
```

```python
import argparse
from gen import HEADER, NAME


def bitrev4(n):
    return ((n & 1) << 3) | ((n & 2) << 1) | ((n & 4) >> 1) | ((n & 8) >> 3)


def gen(stamps=False, vfirst=4, PF=2, exp="", PF2=0, CPF=False):
    S = 16; NW = 8; NL = 16; NWG = 256
    LDS_ACC = 0
    LDS_MAX = NW * 1024
    LDS_L = LDS_MAX + 128
    LDS_BYTES = LDS_L + 128
    ML_OFF = 0x40000
    FAST_OFF = 0x80000
    LANE, C, R, TOK, BASE, PG, T0 = "v1", "v2", "v3", "v4", "v5", "v6", "v7"
    Q = 8
    M0, M1, PH, PL, LRD, FILL, CNT, T1 = "v12", "v13", "v14", "v15", "v16", "v17", "v18", "v19"
    D0, D1 = 20, 24
    SA = 20
    SP, SQ = "v24", "v25"
    G = [26, 27, 28, 29]
    TX = "v30"
    OFF = ["v31", "v32"]
    AFAST, ASLOT, AML, ACNT, LWR, L16, LMX = "v33", "v34", "v35", "v36", "v37", "v38", "v39"
    KB = 40; VB = KB + 4 * NL
    NVGPR = VB + 4 * NL
    assert NVGPR == 168
    DPP = "row_mask:0xf bank_mask:0xf"
    o = []
    A = o.append

    def stamp(k):
        if stamps:
            A(f"  s_memrealtime s[{80+2*k}:{81+2*k}]")

    def write_stamps(n=10):
        A("  s_memrealtime s[96:97]")
        A("  s_waitcnt lgkmcnt(0)")
        A("  s_lshl_b32 s36, s2, 6")
        A(f"  s_add_u32 s36, s36, {128<<20}")
        A("  v_mov_b32 v7, s36")
        for k in range(n):
            A(f"  v_mov_b32 v8, s{80+2*k}")
            A(f"  global_store_dword v7, v8, s[18:19] offset:{4*k}")

    A(HEADER.rstrip("\n"))
    A(f"; @launch grid=({NWG},1,1) block=({64*NW},1,1) lds={LDS_BYTES}")
    A('.amdgcn_target "amdgcn-amd-amdhsa--gfx950"')
    A(".text")
    A(f".globl {NAME}_kernel")
    A(".p2align 8")
    A(f".type {NAME}_kernel,@function")
    A(f"{NAME}_kernel:")
    A(f"  s_cmp_ge_u32 s2, {NWG}")
    A("  s_cbranch_scc1 L_end")
    A("  s_load_dwordx16 s[4:19], s[0:1], 0")
    stamp(0)
    if CPF:
        A("  s_getpc_b64 s[46:47]")
        A("L_pc:")
        A(f"  v_lshlrev_b32 {T0}, 4, v0")
        A(f"  v_min_u32 {T0}, L_codeend-L_pc-16, {T0}")
        A(f"  global_load_dwordx4 v[{VB+60}:{VB+63}], {T0}, s[46:47]")
    A(f"  v_lshrrev_b32 {T0}, 6, v0")
    A(f"  v_and_b32 {C}, 15, v0")
    A(f"  v_readfirstlane_b32 s30, {T0}          ; w")
    A(f"  v_bfe_u32 {R}, v0, 4, 2")
    A(f"  v_and_b32 {LANE}, 63, v0")
    TABS = {
        "x3": [(0, 2), (4, 6), (8, 10), (12, 14), (1, 3), (5, 7), (9, 11), (13, 15)],
        "ta": [(0, 8), (1, 15), (2, 10), (3, 11), (4, 12), (5, 13), (6, 14), (7, 9)],
        "tb": [(0, 2), (15, 1), (4, 6), (3, 5), (8, 10), (7, 9), (12, 14), (11, 13)],
        "tc": [(0, 2), (4, 6), (8, 10), (12, 14), (1, 3), (5, 7), (9, 15), (13, 11)],
        "td": [(0, 2), (4, 1), (8, 10), (12, 3), (6, 15), (5, 7), (14, 9), (13, 11)],
    }
    tab = TABS[[k for k in TABS if k in exp.split(",")][0]] if any(k in exp.split(",") for k in TABS) else TABS["x3"]
    assert sorted(h for t in tab for h in t) == list(range(16))
    word = 0
    for x in range(8):
        for b in range(2):
            word |= tab[x][b] << (4 * (b * 8 + x))
    A(f"  s_mov_b32 s28, {word & 0xffffffff:#x}")
    A(f"  s_mov_b32 s29, {word >> 32:#x}")
    A("  s_and_b32 s36, s2, 15")
    A("  s_lshl_b32 s36, s36, 2")
    A("  s_lshr_b64 s[28:29], s[28:29], s36")
    A("  s_and_b32 s28, s28, 15")
    A("  s_lshr_b32 s29, s2, 4                   ; split")
    A("  s_lshl_b32 s31, s28, 4")
    A("  s_add_u32 s31, s31, s29")
    A("  s_getreg_b32 s38, hwreg(HW_REG_XCC_ID)")
    A("  s_and_b32 s38, s38, 15")
    if "bal" in exp.split(","):
        A("  s_lshr_b32 s36, s29, 3")
        A("  s_lshl_b32 s37, s30, 1")
        A("  s_add_u32 s39, s36, s37")
        A("  s_lshl_b32 s36, s39, 2")
        A(f"  v_lshlrev_b32 {CNT}, 6, {C}")
        A(f"  v_add_u32 {CNT}, s36, {CNT}")
        A("  s_lshl_b32 s36, s28, 9")
        A(f"  v_and_b32 {T1}, 31, v0")
        A(f"  v_lshlrev_b32 {T1}, 4, {T1}")
        A(f"  v_add_u32 {T1}, s36, {T1}")
        A("  s_and_b32 s36, s29, 7")
        A("  s_lshl_b32 s36, s36, 1")
        A(f"  v_lshrrev_b32 {T0}, 1, {R}")
        A(f"  v_add_u32 {T0}, s36, {T0}")
        A(f"  v_lshlrev_b32 {BASE}, 13, {T0}")
        A(f"  v_add_u32 {BASE}, {BASE}, {T1}")
        A("  s_lshl_b32 s36, s39, 4")
        A(f"  v_lshl_add_u32 {TOK}, {C}, 8, {T0}")
        A(f"  v_add_u32 {TOK}, s36, {TOK}             ; token(r,c)")
    else:
        A("  s_mov_b32 s39, s29")
        A("  s_lshl_b32 s36, s29, 2")
        A(f"  v_lshlrev_b32 {CNT}, 6, {C}")
        A(f"  v_add_u32 {CNT}, s36, {CNT}")
        A("  s_lshl_b32 s36, s28, 9")
        A(f"  v_and_b32 {T1}, 31, v0")
        A(f"  v_lshlrev_b32 {T1}, 4, {T1}")
        A(f"  v_add_u32 {T1}, s36, {T1}")
        A(f"  v_lshrrev_b32 {T0}, 5, v0")
        A(f"  v_lshlrev_b32 {BASE}, 13, {T0}")
        A(f"  v_add_u32 {BASE}, {BASE}, {T1}")
        A("  s_lshl_b32 s36, s29, 4")
        A(f"  v_lshl_add_u32 {TOK}, {C}, 8, {T0}")
        A(f"  v_add_u32 {TOK}, s36, {TOK}")
    A("  s_lshl_b32 s36, s31, 10")
    A(f"  v_lshlrev_b32 {L16}, 4, {LANE}          ; lane*16")
    A(f"  v_add_u32 {ASLOT}, s36, {L16}")
    A(f"  v_add_u32 {AFAST}, {FAST_OFF}, {ASLOT}")
    A("  s_lshl_b32 s37, s31, 5")
    A(f"  s_add_u32 s37, s37, {ML_OFF}")
    A(f"  v_and_b32 {LRD}, 1, {R}")
    A(f"  v_lshl_add_u32 {AML}, {LRD}, 4, s37")
    A("  s_lshl_b32 s36, s39, 17")
    A(f"  v_add_u32 {OFF[0]}, s36, {BASE}")
    for k in range(4):
        A(f"  v_mov_b32 v{D0+k}, -1")
    A("  s_waitcnt lgkmcnt(0)")
    A("  s_load_dword s32, s[12:13], 0           ; context_len")
    A(f"  global_load_dword {PG}, {CNT}, s[10:11]")
    for k in range(PF):
        if k:
            A(f"  v_add_u32 {OFF[0]}, {16<<17}, {OFF[0]}")
        A(f"  global_load_dwordx4 v[{VB+4*k}:{VB+4*k+3}], {OFF[0]}, s[6:7]")
    if PF2:
        A("  s_bitcmp0_b32 s2, 2")
        A("  s_cbranch_scc1 L_nopf2")
        for k in range(PF, PF + PF2):
            if k:
                A(f"  v_add_u32 {OFF[0]}, {16<<17}, {OFF[0]}")
            A(f"  global_load_dwordx4 v[{VB+4*k}:{VB+4*k+3}], {OFF[0]}, s[6:7]")
        A("L_nopf2:")
    A(f"  global_load_dwordx4 v[{Q}:{Q+3}], {T1}, s[4:5]")
    A("  s_cmp_lg_u32 s30, 7")
    A("  s_cbranch_scc1 L_noclear")
    A(f"  global_store_dwordx4 {ASLOT}, v[{D0}:{D0+3}], s[18:19] sc1")
    A(f"  global_store_dwordx4 {AML}, v[{D0}:{D0+3}], s[18:19] sc1")
    A(f"  global_store_dwordx4 {AFAST}, v[{D0}:{D0+3}], s[18:19]")
    A("L_noclear:")
    A("  s_mov_b32 s20, s6")
    A("  s_and_b32 s21, s7, 0xffff")
    A("  s_mov_b32 s22, 34078720")
    A("  s_mov_b32 s23, 0x00020000")
    A("  s_mov_b32 s24, s8")
    A("  s_and_b32 s25, s9, 0xffff")
    A("  s_mov_b32 s26, 34078720")
    A("  s_mov_b32 s27, 0x00020000")
    A("  s_mov_b32 s35, 0x3e0293ee               ; log2(e)/sqrt(128)")
    A(f"  v_and_b32 {T0}, 1, {C}")
    A(f"  v_mov_b32 {LWR}, 0xffff")
    A(f"  v_lshlrev_b32 {LMX}, 4, {T0}")
    A(f"  v_lshlrev_b32 {LWR}, {LMX}, {LWR}")
    A(f"  v_cmp_eq_u32_e64 s[42:43], 1, {T0}")
    A(f"  v_lshrrev_b32 {T0}, 3, {C}")
    A(f"  v_cmp_eq_u32 vcc, {T0}, {LRD}")
    A(f"  v_and_b32 {T0}, 2, {C}")
    A(f"  v_cmp_eq_u32_e64 s[40:41], 2, {T0}")
    A(f"  v_cndmask_b32 {LWR}, 0, {LWR}, vcc")
    A(f"  v_lshlrev_b32 {LRD}, 6, {LRD}")
    A(f"  v_lshrrev_b32 {T0}, 5, v0")
    A(f"  v_cndmask_b32_e64 {M0}, {LWR}, 0, s[40:41]")
    A(f"  v_cndmask_b32_e64 {M1}, 0, {LWR}, s[40:41]")
    A(f"  v_lshl_add_u32 {LMX}, {T0}, 2, {LRD}")
    A("  s_lshl_b32 s36, s30, 10")
    A(f"  v_add_u32 {LWR}, s36, {L16}             ; w*1024+lane*16")
    A("  s_lshl_b32 s36, s28, 4")
    A(f"  v_mov_b32 {ACNT}, s36")
    A(f"  v_mov_b32 {T0}, 1")
    if PF2:
        A("  s_bitcmp0_b32 s2, 2")
        A("  s_cbranch_scc1 L_wpf")
        A(f"  s_waitcnt vmcnt({PF+PF2+1}) lgkmcnt(0)")
        A("  s_branch L_wpf2")
        A("L_wpf:")
        A(f"  s_waitcnt vmcnt({PF+1}) lgkmcnt(0)")
        A("L_wpf2:")
    else:
        A(f"  s_waitcnt vmcnt({PF+1}) lgkmcnt(0)")
    A("  s_cmp_lg_u32 s30, 7")
    A("  s_cbranch_scc1 L_noflag")
    A("  s_waitcnt vmcnt(0)")
    A("  s_mov_b64 exec, 1")
    A(f"  global_atomic_add {ACNT}, {T0}, s[16:17] sc1")
    A("  s_mov_b64 exec, -1")
    A("L_noflag:")
    stamp(2)
    A("  s_cmp_lt_i32 s32, 1")
    A("  s_cselect_b32 s33, 4096, s32")
    A("  s_cselect_b32 s34, 0, 0xf149f2ca")
    A("  s_min_u32 s33, s33, 4096")
    A(f"  v_lshlrev_b32 {PG}, 17, {PG}")
    A(f"  v_cmp_gt_u32 vcc, s33, {TOK}")
    A(f"  v_cmp_gt_i32_e64 s[44:45], s32, {TOK}")
    A(f"  v_mov_b32 {FILL}, s34")
    A(f"  v_cndmask_b32 {PG}, 0x40000000, {PG}, vcc")
    A("  s_nop 1")
    for n in range(NL):
        A(f"  v_add_u32_dpp {OFF[n%2]}, {PG}, {BASE} row_newbcast:{bitrev4(n)} {DPP}")
        A(f"  buffer_load_dwordx4 v[{KB+4*n}:{KB+4*n+3}], {OFF[n%2]}, s[20:23], 0 offen nt")
    issued = 0

    def issue_v(upto):
        nonlocal issued
        while issued < upto:
            i = issued
            A(f"  v_add_u32_dpp {OFF[i%2]}, {PG}, {BASE} row_newbcast:{bitrev4(i)} {DPP}")
            A(f"  buffer_load_dwordx4 v[{VB+4*i}:{VB+4*i+3}], {OFF[i%2]}, s[24:27], 0 offen nt")
            issued += 1
    A("  s_barrier")
    assert vfirst <= 12
    issue_v(vfirst)
    for g in range(4):
        n = (NL - 4 * g - 4) + issued
        A(f"  s_waitcnt vmcnt({n})")
        for j in range(4):
            for a in range(4):
                i = 4 * g + a
                c = "0" if j == 0 else f"v{SA+a}"
                A(f"  v_dot2_f32_bf16 v{SA+a}, v{KB+4*i+j}, v{Q+j}, {c}")
        A(f"  v_add_f32_dpp {SP}, v{SA}, v{SA} row_ror:8 row_mask:0xf bank_mask:0x3")
        A(f"  v_add_f32_dpp {SP}, v{SA+1}, v{SA+1} row_ror:8 row_mask:0xf bank_mask:0xc")
        A(f"  v_add_f32_dpp {SQ}, v{SA+2}, v{SA+2} row_ror:8 row_mask:0xf bank_mask:0x3")
        A(f"  v_add_f32_dpp {SQ}, v{SA+3}, v{SA+3} row_ror:8 row_mask:0xf bank_mask:0xc")
        A(f"  v_add_f32_dpp v{G[g]}, {SP}, {SP} row_ror:12 row_mask:0xf bank_mask:0x5")
        A("  s_nop 0")
        A(f"  v_add_f32_dpp v{G[g]}, {SQ}, {SQ} row_ror:4 row_mask:0xf bank_mask:0xa")
        if g in (1, 3):
            a, b = G[g - 1], G[g]
            A(f"  v_cndmask_b32_e64 {TX}, v{b}, v{a}, s[40:41]")
            A(f"  v_cndmask_b32_e64 v{a}, v{a}, v{b}, s[40:41]")
            A("  s_nop 0")
            A(f"  v_add_f32_dpp v{a}, {TX}, v{a} quad_perm:[2,3,0,1] {DPP}")
    TT = f"v{G[0]}"
    A(f"  v_cndmask_b32_e64 {TX}, v{G[2]}, v{G[0]}, s[42:43]")
    A(f"  v_cndmask_b32_e64 {TT}, v{G[0]}, v{G[2]}, s[42:43]")
    A("  s_nop 0")
    A(f"  v_add_f32_dpp {TT}, {TX}, {TT} quad_perm:[1,0,3,2] {DPP}")
    A(f"  v_mul_f32 {TT}, s35, {TT}")
    A(f"  v_cndmask_b32_e64 {TT}, {FILL}, {TT}, s[44:45]")
    A("  s_nop 1")
    A(f"  v_max_f32_dpp {T0}, {TT}, {TT} row_ror:8 {DPP}")
    for sh in (4, 2, 1):
        A("  s_nop 1")
        A(f"  v_max_f32_dpp {T0}, {T0}, {T0} row_ror:{sh} {DPP}")
    stamp(4)
    A(f"  ds_write_b32 {LMX}, {T0} offset:{LDS_MAX}")
    A("  s_waitcnt lgkmcnt(0)")
    A("  s_barrier")
    stamp(3)
    for k in range(4):
        A(f"  ds_read_b128 v[{KB+4*k}:{KB+4*k+3}], {LRD} offset:{LDS_MAX+16*k}")
    for k in range(4):
        A(f"  s_waitcnt lgkmcnt({3-k})")
        A(f"  v_max3_f32 {T0}, {T0}, v{KB+4*k}, v{KB+1+4*k}")
        A(f"  v_max3_f32 {T0}, {T0}, v{KB+4*k+2}, v{KB+3+4*k}")
    A(f"  v_sub_f32 {TT}, {TT}, {T0}")
    A(f"  v_exp_f32 {TT}, {TT}")
    A("  s_nop 0")
    A(f"  v_cvt_pk_bf16_f32 {PH}, {TT}, {TT}")
    A(f"  v_add_f32_dpp {T1}, {TT}, {TT} row_ror:8 {DPP}")
    A(f"  v_and_b32 {PL}, 0xffff0000, {PH}")
    A(f"  v_sub_f32 {PL}, {TT}, {PL}")
    A(f"  v_add_f32_dpp {T1}, {T1}, {T1} row_ror:4 {DPP}")
    A(f"  v_cvt_pk_bf16_f32 {PL}, {PL}, {PL}")
    A("  s_nop 0")
    A(f"  v_add_f32_dpp {T1}, {T1}, {T1} row_ror:2 {DPP}")
    A("  s_nop 1")
    A(f"  v_add_f32_dpp {T1}, {T1}, {T1} row_ror:1 {DPP}")
    A(f"  ds_write_b32 {LMX}, {T1} offset:{LDS_L}")
    A("  s_waitcnt lgkmcnt(0)")
    A("  s_barrier")
    stamp(1)
    A("  s_cmp_lg_u32 s30, 0")
    A("  s_cbranch_scc1 L_noml")
    for k in range(4):
        A(f"  ds_read_b128 v[{KB+4*k}:{KB+3+4*k}], {LRD} offset:{LDS_L+16*k}")
    A("  s_waitcnt lgkmcnt(0)")
    for k in range(4):
        A(f"  v_pk_add_f32 v[{KB+4*k}:{KB+4*k+1}], v[{KB+4*k}:{KB+4*k+1}], v[{KB+4*k+2}:{KB+4*k+3}]")
    A(f"  v_pk_add_f32 v[{KB}:{KB+1}], v[{KB}:{KB+1}], v[{KB+4}:{KB+5}]")
    A(f"  v_pk_add_f32 v[{KB+8}:{KB+9}], v[{KB+8}:{KB+9}], v[{KB+12}:{KB+13}]")
    A(f"  v_pk_add_f32 v[{KB}:{KB+1}], v[{KB}:{KB+1}], v[{KB+8}:{KB+9}]")
    A(f"  v_add_f32 v{Q+1}, v{KB}, v{KB+1}")
    A(f"  v_min_u32 v{Q}, -2, {T0}")
    A(f"  v_min_u32 v{Q+1}, -2, v{Q+1}")
    A(f"  v_mov_b32 v{Q+2}, s38")
    A(f"  global_store_dwordx3 {AML}, v[{Q}:{Q+2}], s[18:19] sc1")
    A("L_noml:")
    issue_v(12)
    A("  s_cmp_lg_u32 s30, 1")
    A("  s_cbranch_scc1 L_nocnt")
    A(f"  global_load_dword {CNT}, {ACNT}, s[16:17] sc1")
    A("L_nocnt:")
    issue_v(NL)
    A("  s_cmp_gt_u32 s30, 1")
    A("  s_cbranch_scc1 L_pv")
    A("  s_cmp_eq_u32 s30, 1")
    A("  s_cbranch_scc1 L_w1")
    A("  s_lshl_b32 s36, s31, 10")
    A(f"  v_lshrrev_b32 {T0}, 1, {R}")
    A(f"  v_lshlrev_b32 {ASLOT}, 9, {T0}")
    A(f"  v_lshl_add_u32 {ASLOT}, {C}, 5, {ASLOT}")
    A(f"  v_and_b32 {T0}, 1, {R}")
    A(f"  v_lshl_add_u32 {ASLOT}, {T0}, 4, {ASLOT}")
    A(f"  v_add_u32 {ASLOT}, s36, {ASLOT}")
    A(f"  v_add_u32 {AFAST}, {FAST_OFF}, {ASLOT}")
    A("  s_branch L_pv")
    A("L_w1:")
    A("  s_lshl_b32 s36, s28, 14")
    A("  s_lshl_b32 s37, s29, 6")
    A("  s_add_u32 s36, s36, s37")
    A(f"  v_lshlrev_b32 {ASLOT}, 12, {R}")
    A(f"  v_lshl_add_u32 {ASLOT}, {C}, 2, {ASLOT}")
    A(f"  v_add_u32 {ASLOT}, s36, {ASLOT}")
    A("  s_lshl_b32 s36, s28, 9")
    A("  s_lshr_b32 s37, s29, 3")
    A("  s_lshl_b32 s37, s37, 4")
    A("  s_add_u32 s36, s36, s37")
    A(f"  s_add_u32 s36, s36, {ML_OFF}")
    A(f"  v_and_b32 {T0}, 3, {C}")
    A(f"  v_lshl_add_u32 {T0}, {R}, 2, {T0}")
    A(f"  v_lshlrev_b32 {AML}, 5, {T0}")
    A(f"  v_add_u32 {AML}, s36, {AML}")
    REC = 28

    def pv(w1):
        for i in range(NL):
            n = NL - 1 - i
            if w1 and i != 12:
                n += 1
            lam = bitrev4(i)
            ab = KB + 2 * (i % 4)
            for w, M in enumerate((M0, M1)):
                A(f"  v_and_b32_dpp v{ab+w}, {PH}, {M} row_newbcast:{lam} row_mask:0xf bank_mask:0x5")
                A(f"  v_and_b32_dpp v{ab+w}, {PL}, {M} row_newbcast:{lam} row_mask:0xf bank_mask:0xa")
            A(f"  s_waitcnt vmcnt({n})")
            A("  s_nop 0")
            c0 = "0" if i == 0 else f"v[{D0}:{D0+3}]"
            c1 = "0" if i == 0 else f"v[{D1}:{D1+3}]"
            A(f"  v_mfma_f32_16x16x16_bf16 v[{D0}:{D0+3}], v[{ab}:{ab+1}], v[{VB+4*i}:{VB+4*i+1}], {c0}")
            A(f"  v_mfma_f32_16x16x16_bf16 v[{D1}:{D1+3}], v[{ab}:{ab+1}], v[{VB+4*i+2}:{VB+4*i+3}], {c1}")
            if w1 and i == 12:
                A(f"  global_load_dwordx3 v[{REC}:{REC+2}], {AML}, s[18:19] sc1")
    stamp(5)
    pv(True)
    A("  s_branch L_pvdone")
    A("L_pv:")
    pv(False)
    A("L_pvdone:")
    stamp(6)
    A("  s_nop 7")
    for k in range(4):
        A(f"  v_permlane16_swap_b32 v{D0+k}, v{D1+k}")
    A(f"  v_pk_add_f32 v[{D0}:{D0+1}], v[{D0}:{D0+1}], v[{D1}:{D1+1}]")
    A(f"  v_pk_add_f32 v[{D0+2}:{D0+3}], v[{D0+2}:{D0+3}], v[{D1+2}:{D1+3}]")
    A(f"  ds_write_b128 {LWR}, v[{D0}:{D0+3}] offset:{LDS_ACC}")
    A("  s_waitcnt lgkmcnt(0)")
    A("  s_barrier")
    A("  s_cmp_gt_u32 s30, 1")
    A("  s_cbranch_scc1 L_end")
    A("  s_cmp_eq_u32 s30, 1")
    A("  s_cbranch_scc1 L_cons")
    for k in range(1, NW):
        A(f"  ds_read_b128 v[{KB+4*k}:{KB+4*k+3}], {L16} offset:{LDS_ACC+1024*k}")
    for k in range(1, NW):
        A(f"  s_waitcnt lgkmcnt({NW-1-k})")
        A(f"  v_pk_add_f32 v[{D0}:{D0+1}], v[{D0}:{D0+1}], v[{KB+4*k}:{KB+4*k+1}]")
        A(f"  v_pk_add_f32 v[{D0+2}:{D0+3}], v[{D0+2}:{D0+3}], v[{KB+4*k+2}:{KB+4*k+3}]")
    for j in range(4):
        A(f"  v_min_u32 v{D0+j}, -2, v{D0+j}")
    A(f"  global_store_dwordx4 {AFAST}, v[{D0}:{D0+3}], s[18:19]")
    A(f"  global_store_dwordx4 {ASLOT}, v[{D0}:{D0+3}], s[18:19] sc1")
    if stamps:
        A("  s_memrealtime s[96:97]")
        A("  s_waitcnt vmcnt(0)")
        A("  s_memrealtime s[98:99]")
        A("  s_waitcnt lgkmcnt(0)")
        A("  s_lshl_b32 s36, s2, 6")
        A(f"  s_add_u32 s36, s36, {128<<20}")
        A("  v_mov_b32 v7, s36")
        A("  v_mov_b32 v8, s96")
        A("  global_store_dword v7, v8, s[18:19] offset:40")
        A("  v_mov_b32 v8, s98")
        A("  global_store_dword v7, v8, s[18:19] offset:44")
    A("  s_endpgm")
    A("L_cons:")
    stamp(9)
    GA = KB
    GV = KB + 4
    WM, WL = f"v{REC}", f"v{REC+1}"

    def issue():
        for m in range(4):
            A(f"  global_load_dword v{GV+m}, v{GA+m}, s[18:19] offset:{m*1024} sc1")
    A("  s_mov_b32 s39, 0x400000")
    A(f"  v_cmp_gt_u32 vcc, {S}, {CNT}")
    A("  s_cbranch_vccz L_cok")
    A("L_cchk:")
    A(f"  global_load_dword {CNT}, {ACNT}, s[16:17] sc1")
    A("  s_sub_u32 s39, s39, 1")
    A("  s_cbranch_scc1 L_end")
    A("  s_waitcnt vmcnt(0)")
    A(f"  v_cmp_gt_u32 vcc, {S}, {CNT}")
    A("  s_cbranch_vccnz L_cchk")
    A("L_mlpoll:")
    A(f"  global_load_dwordx3 v[{REC}:{REC+2}], {AML}, s[18:19] sc1")
    A("  s_sub_u32 s39, s39, 1")
    A("  s_cbranch_scc1 L_end")
    A("L_cok:")
    A("  s_waitcnt vmcnt(0)")
    A(f"  v_max3_u32 {T0}, v{REC}, v{REC+1}, v{REC+2}")
    A(f"  v_cmp_eq_u32 vcc, -1, {T0}")
    A("  s_cbranch_vccnz L_mlpoll")
    A(f"  v_cmp_eq_u32 vcc, s38, v{REC+2}")
    A(f"  v_mov_b32 {T1}, {FAST_OFF}")
    A(f"  v_mov_b32 {T0}, {WM}")
    if "slowonly" in exp:
        A(f"  v_mov_b32 v{REC+2}, 0")
    else:
        A(f"  v_cndmask_b32 v{REC+2}, 0, {T1}, vcc")
    A("  s_nop 1")
    for m in range(4):
        A(f"  v_add_u32_dpp v{GA+m}, v{REC+2}, {ASLOT} row_newbcast:{m} {DPP}")
    issue()

    def allred(op, reg, tmp):
        for sh in (2, 1):
            A("  s_nop 1")
            A(f"  {op}_dpp {reg}, {reg}, {reg} row_ror:{sh} {DPP}")
        A(f"  v_mov_b32 {tmp}, {reg}")
        A("  s_nop 1")
        A(f"  v_permlane16_swap_b32 {reg}, {tmp}")
        A("  s_nop 1")
        A(f"  {op} {reg}, {reg}, {tmp}")
        A(f"  v_mov_b32 {tmp}, {reg}")
        A("  s_nop 1")
        A(f"  v_permlane32_swap_b32 {reg}, {tmp}")
        A("  s_nop 1")
        A(f"  {op} {reg}, {reg}, {tmp}")
    allred("v_max_f32", T0, T1)
    A(f"  v_sub_f32 {WM}, {WM}, {T0}")
    A(f"  v_exp_f32 {WM}, {WM}")
    A("  s_nop 0")
    A(f"  v_mul_f32 {WL}, {WM}, {WL}")
    allred("v_add_f32", WL, T1)
    A(f"  v_rcp_f32 {WL}, {WL}")
    A("  s_lshl_b32 s36, s31, 5")
    A(f"  v_lshlrev_b32 v{Q}, 1, {C}")
    A(f"  v_mul_f32 {WM}, {WM}, {WL}")
    A(f"  v_add_u32 v{Q}, s36, v{Q}")
    A("  s_branch L_chk")
    A("L_poll:")
    issue()
    A("  s_sub_u32 s39, s39, 1")
    A("  s_cbranch_scc1 L_end")
    A("L_chk:")
    A("  s_waitcnt vmcnt(0)")
    A(f"  v_max3_u32 {T0}, v{GV}, v{GV+1}, v{GV+2}")
    A(f"  v_max_u32 {T0}, {T0}, v{GV+3}")
    A(f"  v_cmp_eq_u32 vcc, -1, {T0}")
    A("  s_cbranch_vccnz L_poll")
    A(f"  v_mul_f32_dpp v{D0}, {WM}, v{GV} row_newbcast:0 {DPP}")
    for m in range(1, 4):
        A(f"  v_fmac_f32_dpp v{D0}, {WM}, v{GV+m} row_newbcast:{m} {DPP}")
    stamp(7)
    A(f"  v_mov_b32 v{D0+1}, v{D0}")
    A("  s_nop 1")
    A(f"  v_permlane16_swap_b32 v{D0}, v{D0+1}")
    A("  s_nop 1")
    A(f"  v_add_f32 v{D0}, v{D0}, v{D0+1}")
    A(f"  v_mov_b32 v{D0+1}, v{D0}")
    A("  s_nop 1")
    A(f"  v_permlane32_swap_b32 v{D0}, v{D0+1}")
    A("  s_nop 1")
    A(f"  v_add_f32 v{D0}, v{D0}, v{D0+1}")
    A(f"  v_cvt_pk_bf16_f32 v{D0}, v{D0}, v{D0}")
    A("  s_mov_b64 exec, 0xffff")
    A(f"  global_store_short v{Q}, v{D0}, s[14:15]")
    if stamps:
        write_stamps()
    A("L_end:")
    A("  s_endpgm")
    A("L_codeend:")
    A('.section .rodata,"a"')
    A(".p2align 6")
    A(f".amdhsa_kernel {NAME}_kernel")
    A(f"  .amdhsa_next_free_vgpr {NVGPR}")
    A(f"  .amdhsa_next_free_sgpr {102 if stamps else 48}")
    A(f"  .amdhsa_accum_offset {(NVGPR+3)//4*4}")
    A("  .amdhsa_group_segment_fixed_size 0")
    A("  .amdhsa_kernarg_size 64")
    A("  .amdhsa_user_sgpr_count 2")
    A("  .amdhsa_user_sgpr_kernarg_segment_ptr 1")
    A("  .amdhsa_system_sgpr_workgroup_id_x 1")
    A("  .amdhsa_float_denorm_mode_32 3")
    A(".end_amdhsa_kernel")
    return "\n".join(o) + "\n"


if __name__ == "__main__":
    ap = argparse.ArgumentParser()
    ap.add_argument("-o", default="cdna_kernels/" + NAME + ".s")
    ap.add_argument("--stamps", action="store_true")
    ap.add_argument("--vfirst", type=int, default=4)
    ap.add_argument("--PF", type=int, default=2)
    ap.add_argument("--exp", default="")
    ap.add_argument("--PF2", type=int, default=0)
    ap.add_argument("--CPF", action="store_true")
    a = ap.parse_args()
    open(a.o, "w").write(gen(a.stamps, a.vfirst, a.PF, a.exp, a.PF2, a.CPF))
```

```python
import argparse
from gen import HEADER, NAME


DOC = """
Split-KV decode attention, one launch. 256 workgroups = 16 head pairs x 16 splits, 8 waves each.
 - one wave-load (1 KB, nt) = 2 tokens x 2 heads; token = 256*slot + 32*wave + 2*split + tok, 16 slots per wave
 - all K loads first, scores by v_dot2 + a DPP reduce-scatter (one score per lane), workgroup max / sum via LDS
 - P*V on 16x16x16 bf16 MFMAs, p split into bf16 high + low parts, A operand built by DPP broadcasts
 - partial (m, l, acc) records go through d_ws; words are marked empty first (arrival counter in d_debug),
   every workgroup then finalises 16 outputs; a copy kept in the producer's L2 is read only by a
   consumer whose XCC id equals the producer's, everybody else reads the write-through copy
"""


def bitrev4(n):
    return ((n & 1) << 3) | ((n & 2) << 1) | ((n & 4) >> 1) | ((n & 8) >> 3)


def gen(stamps=False, vfirst=4, PF=2, exp="", PF2=0, CPF=False):
    S = 16; NW = 8; NL = 16; NWG = 256
    LDS_ACC = 0
    LDS_MAX = NW * 1024
    LDS_L = LDS_MAX + 128
    LDS_BYTES = LDS_L + 128
    ML_OFF = 0x40000
    FAST_OFF = 0x80000
    LANE, C, R, TOK, BASE, PG, T0 = "v1", "v2", "v3", "v4", "v5", "v6", "v7"
    Q = 8
    M0, M1, PH, PL, LRD, FILL, CNT, T1 = "v12", "v13", "v14", "v15", "v16", "v17", "v18", "v19"
    D0, D1 = 20, 24
    SA = 20
    SP, SQ = "v24", "v25"
    G = [26, 27, 28, 29]
    TX = "v30"
    OFF = ["v31", "v32"]
    AFAST, ASLOT, AML, ACNT, LWR, L16, LMX = "v33", "v34", "v35", "v36", "v37", "v38", "v39"
    KB = 40; VB = KB + 4 * NL
    NVGPR = VB + 4 * NL
    assert NVGPR == 168
    DPP = "row_mask:0xf bank_mask:0xf"
    o = []
    A = o.append

    def stamp(k):
        if stamps:
            A(f"  s_memrealtime s[{80+2*k}:{81+2*k}]")

    def write_stamps(n=10):
        A("  s_memrealtime s[96:97]")
        A("  s_waitcnt lgkmcnt(0)")
        A("  s_lshl_b32 s36, s2, 6")
        A(f"  s_add_u32 s36, s36, {128<<20}")
        A("  v_mov_b32 v7, s36")
        for k in range(n):
            A(f"  v_mov_b32 v8, s{80+2*k}")
            A(f"  global_store_dword v7, v8, s[18:19] offset:{4*k}")

    A(HEADER.rstrip("\n"))
    for l in DOC.strip("\n").split("\n"):
        A("; " + l)
    A(f"; @launch grid=({NWG},1,1) block=({64*NW},1,1) lds={LDS_BYTES}")
    A('.amdgcn_target "amdgcn-amd-amdhsa--gfx950"')
    A(".text")
    A(f".globl {NAME}_kernel")
    A(".p2align 8")
    A(f".type {NAME}_kernel,@function")
    A(f"{NAME}_kernel:")
    A(f"  s_cmp_ge_u32 s2, {NWG}")
    A("  s_cbranch_scc1 L_end")
    A("  s_load_dwordx16 s[4:19], s[0:1], 0")
    stamp(0)
    if CPF:
        A("  s_getpc_b64 s[46:47]")
        A("L_pc:")
        A(f"  v_lshlrev_b32 {T0}, 4, v0")
        A(f"  v_min_u32 {T0}, L_codeend-L_pc-16, {T0}")
        A(f"  global_load_dwordx4 v[{VB+60}:{VB+63}], {T0}, s[46:47]")
    A(f"  v_lshrrev_b32 {T0}, 6, v0")
    A(f"  v_and_b32 {C}, 15, v0")
    A(f"  v_readfirstlane_b32 s30, {T0}          ; w")
    A(f"  v_bfe_u32 {R}, v0, 4, 2")
    A(f"  v_and_b32 {LANE}, 63, v0")
    TABS = {
        "x3": [(0, 2), (4, 6), (8, 10), (12, 14), (1, 3), (5, 7), (9, 11), (13, 15)],
        "ta": [(0, 8), (1, 15), (2, 10), (3, 11), (4, 12), (5, 13), (6, 14), (7, 9)],
        "tb": [(0, 2), (15, 1), (4, 6), (3, 5), (8, 10), (7, 9), (12, 14), (11, 13)],
        "tc": [(0, 2), (4, 6), (8, 10), (12, 14), (1, 3), (5, 7), (9, 15), (13, 11)],
        "td": [(0, 2), (4, 1), (8, 10), (12, 3), (6, 15), (5, 7), (14, 9), (13, 11)],
    }
    tab = TABS[[k for k in TABS if k in exp.split(",")][0]] if any(k in exp.split(",") for k in TABS) else TABS["x3"]
    assert sorted(h for t in tab for h in t) == list(range(16))
    word = 0
    for x in range(8):
        for b in range(2):
            word |= tab[x][b] << (4 * (b * 8 + x))
    A(f"  s_mov_b32 s28, {word & 0xffffffff:#x}")
    A(f"  s_mov_b32 s29, {word >> 32:#x}")
    A("  s_and_b32 s36, s2, 15")
    A("  s_lshl_b32 s36, s36, 2")
    A("  s_lshr_b64 s[28:29], s[28:29], s36")
    A("  s_and_b32 s28, s28, 15")
    A("  s_lshr_b32 s29, s2, 4                   ; split")
    A("  s_lshl_b32 s31, s28, 4")
    A("  s_add_u32 s31, s31, s29")
    A("  s_getreg_b32 s38, hwreg(HW_REG_XCC_ID)")
    A("  s_and_b32 s38, s38, 15")
    if "bal" in exp.split(","):
        A("  s_lshr_b32 s36, s29, 3")
        A("  s_lshl_b32 s37, s30, 1")
        A("  s_add_u32 s39, s36, s37")
        A("  s_lshl_b32 s36, s39, 2")
        A(f"  v_lshlrev_b32 {CNT}, 6, {C}")
        A(f"  v_add_u32 {CNT}, s36, {CNT}")
        A("  s_lshl_b32 s36, s28, 9")
        A(f"  v_and_b32 {T1}, 31, v0")
        A(f"  v_lshlrev_b32 {T1}, 4, {T1}")
        A(f"  v_add_u32 {T1}, s36, {T1}")
        A("  s_and_b32 s36, s29, 7")
        A("  s_lshl_b32 s36, s36, 1")
        A(f"  v_lshrrev_b32 {T0}, 1, {R}")
        A(f"  v_add_u32 {T0}, s36, {T0}")
        A(f"  v_lshlrev_b32 {BASE}, 13, {T0}")
        A(f"  v_add_u32 {BASE}, {BASE}, {T1}")
        A("  s_lshl_b32 s36, s39, 4")
        A(f"  v_lshl_add_u32 {TOK}, {C}, 8, {T0}")
        A(f"  v_add_u32 {TOK}, s36, {TOK}             ; token(r,c)")
    else:
        A("  s_mov_b32 s39, s29")
        A("  s_lshl_b32 s36, s29, 2")
        A(f"  v_lshlrev_b32 {CNT}, 6, {C}")
        A(f"  v_add_u32 {CNT}, s36, {CNT}")
        A("  s_lshl_b32 s36, s28, 9")
        A(f"  v_and_b32 {T1}, 31, v0")
        A(f"  v_lshlrev_b32 {T1}, 4, {T1}")
        A(f"  v_add_u32 {T1}, s36, {T1}")
        A(f"  v_lshrrev_b32 {T0}, 5, v0")
        A(f"  v_lshlrev_b32 {BASE}, 13, {T0}")
        A(f"  v_add_u32 {BASE}, {BASE}, {T1}")
        A("  s_lshl_b32 s36, s29, 4")
        A(f"  v_lshl_add_u32 {TOK}, {C}, 8, {T0}")
        A(f"  v_add_u32 {TOK}, s36, {TOK}")
    A("  s_lshl_b32 s36, s31, 10")
    A(f"  v_lshlrev_b32 {L16}, 4, {LANE}          ; lane*16")
    A(f"  v_add_u32 {ASLOT}, s36, {L16}")
    A(f"  v_add_u32 {AFAST}, {FAST_OFF}, {ASLOT}")
    A("  s_lshl_b32 s37, s31, 5")
    A(f"  s_add_u32 s37, s37, {ML_OFF}")
    A(f"  v_and_b32 {LRD}, 1, {R}")
    A(f"  v_lshl_add_u32 {AML}, {LRD}, 4, s37")
    A("  s_lshl_b32 s36, s39, 17")
    A(f"  v_add_u32 {OFF[0]}, s36, {BASE}")
    for k in range(4):
        A(f"  v_mov_b32 v{D0+k}, -1")
    A("  s_waitcnt lgkmcnt(0)")
    A("  s_load_dword s32, s[12:13], 0           ; context_len")
    A(f"  global_load_dword {PG}, {CNT}, s[10:11]")
    for k in range(PF):
        if k:
            A(f"  v_add_u32 {OFF[0]}, {16<<17}, {OFF[0]}")
        A(f"  global_load_dwordx4 v[{VB+4*k}:{VB+4*k+3}], {OFF[0]}, s[6:7]")
    if PF2:
        A("  s_bitcmp0_b32 s2, 2")
        A("  s_cbranch_scc1 L_nopf2")
        for k in range(PF, PF + PF2):
            if k:
                A(f"  v_add_u32 {OFF[0]}, {16<<17}, {OFF[0]}")
            A(f"  global_load_dwordx4 v[{VB+4*k}:{VB+4*k+3}], {OFF[0]}, s[6:7]")
        A("L_nopf2:")
    A(f"  global_load_dwordx4 v[{Q}:{Q+3}], {T1}, s[4:5]")
    A("  s_cmp_lg_u32 s30, 7")
    A("  s_cbranch_scc1 L_noclear")
    A(f"  global_store_dwordx4 {ASLOT}, v[{D0}:{D0+3}], s[18:19] sc1")
    A(f"  global_store_dwordx4 {AML}, v[{D0}:{D0+3}], s[18:19] sc1")
    A(f"  global_store_dwordx4 {AFAST}, v[{D0}:{D0+3}], s[18:19]")
    A("L_noclear:")
    A("  s_mov_b32 s20, s6")
    A("  s_and_b32 s21, s7, 0xffff")
    A("  s_mov_b32 s22, 34078720")
    A("  s_mov_b32 s23, 0x00020000")
    A("  s_mov_b32 s24, s8")
    A("  s_and_b32 s25, s9, 0xffff")
    A("  s_mov_b32 s26, 34078720")
    A("  s_mov_b32 s27, 0x00020000")
    A("  s_mov_b32 s35, 0x3e0293ee               ; log2(e)/sqrt(128)")
    A(f"  v_and_b32 {T0}, 1, {C}")
    A(f"  v_mov_b32 {LWR}, 0xffff")
    A(f"  v_lshlrev_b32 {LMX}, 4, {T0}")
    A(f"  v_lshlrev_b32 {LWR}, {LMX}, {LWR}")
    A(f"  v_cmp_eq_u32_e64 s[42:43], 1, {T0}")
    A(f"  v_lshrrev_b32 {T0}, 3, {C}")
    A(f"  v_cmp_eq_u32 vcc, {T0}, {LRD}")
    A(f"  v_and_b32 {T0}, 2, {C}")
    A(f"  v_cmp_eq_u32_e64 s[40:41], 2, {T0}")
    A(f"  v_cndmask_b32 {LWR}, 0, {LWR}, vcc")
    A(f"  v_lshlrev_b32 {LRD}, 6, {LRD}")
    A(f"  v_lshrrev_b32 {T0}, 5, v0")
    A(f"  v_cndmask_b32_e64 {M0}, {LWR}, 0, s[40:41]")
    A(f"  v_cndmask_b32_e64 {M1}, 0, {LWR}, s[40:41]")
    A(f"  v_lshl_add_u32 {LMX}, {T0}, 2, {LRD}")
    A("  s_lshl_b32 s36, s30, 10")
    A(f"  v_add_u32 {LWR}, s36, {L16}             ; w*1024+lane*16")
    A("  s_lshl_b32 s36, s28, 4")
    A(f"  v_mov_b32 {ACNT}, s36")
    A(f"  v_mov_b32 {T0}, 1")
    if PF2:
        A("  s_bitcmp0_b32 s2, 2")
        A("  s_cbranch_scc1 L_wpf")
        A(f"  s_waitcnt vmcnt({PF+PF2+1}) lgkmcnt(0)")
        A("  s_branch L_wpf2")
        A("L_wpf:")
        A(f"  s_waitcnt vmcnt({PF+1}) lgkmcnt(0)")
        A("L_wpf2:")
    else:
        A(f"  s_waitcnt vmcnt({PF+1}) lgkmcnt(0)")
    A("  s_cmp_lg_u32 s30, 7")
    A("  s_cbranch_scc1 L_noflag")
    A("  s_waitcnt vmcnt(0)")
    A("  s_mov_b64 exec, 1")
    A(f"  global_atomic_add {ACNT}, {T0}, s[16:17] sc1")
    A("  s_mov_b64 exec, -1")
    A("L_noflag:")
    stamp(2)
    A("  s_cmp_lt_i32 s32, 1")
    A("  s_cselect_b32 s33, 4096, s32")
    A("  s_cselect_b32 s34, 0, 0xf149f2ca")
    A("  s_min_u32 s33, s33, 4096")
    A(f"  v_lshlrev_b32 {PG}, 17, {PG}")
    A(f"  v_cmp_gt_u32 vcc, s33, {TOK}")
    A(f"  v_cmp_gt_i32_e64 s[44:45], s32, {TOK}")
    A(f"  v_mov_b32 {FILL}, s34")
    A(f"  v_cndmask_b32 {PG}, 0x40000000, {PG}, vcc")
    A("  s_nop 1")
    for n in range(NL):
        A(f"  v_add_u32_dpp {OFF[n%2]}, {PG}, {BASE} row_newbcast:{bitrev4(n)} {DPP}")
        A(f"  buffer_load_dwordx4 v[{KB+4*n}:{KB+4*n+3}], {OFF[n%2]}, s[20:23], 0 offen nt")
    issued = 0

    def issue_v(upto):
        nonlocal issued
        while issued < upto:
            i = issued
            A(f"  v_add_u32_dpp {OFF[i%2]}, {PG}, {BASE} row_newbcast:{bitrev4(i)} {DPP}")
            A(f"  buffer_load_dwordx4 v[{VB+4*i}:{VB+4*i+3}], {OFF[i%2]}, s[24:27], 0 offen nt")
            issued += 1
    A("  s_barrier")
    assert vfirst <= 12
    issue_v(vfirst)
    for g in range(4):
        n = (NL - 4 * g - 4) + issued
        A(f"  s_waitcnt vmcnt({n})")
        for j in range(4):
            for a in range(4):
                i = 4 * g + a
                c = "0" if j == 0 else f"v{SA+a}"
                A(f"  v_dot2_f32_bf16 v{SA+a}, v{KB+4*i+j}, v{Q+j}, {c}")
        A(f"  v_add_f32_dpp {SP}, v{SA}, v{SA} row_ror:8 row_mask:0xf bank_mask:0x3")
        A(f"  v_add_f32_dpp {SP}, v{SA+1}, v{SA+1} row_ror:8 row_mask:0xf bank_mask:0xc")
        A(f"  v_add_f32_dpp {SQ}, v{SA+2}, v{SA+2} row_ror:8 row_mask:0xf bank_mask:0x3")
        A(f"  v_add_f32_dpp {SQ}, v{SA+3}, v{SA+3} row_ror:8 row_mask:0xf bank_mask:0xc")
        A(f"  v_add_f32_dpp v{G[g]}, {SP}, {SP} row_ror:12 row_mask:0xf bank_mask:0x5")
        A("  s_nop 0")
        A(f"  v_add_f32_dpp v{G[g]}, {SQ}, {SQ} row_ror:4 row_mask:0xf bank_mask:0xa")
        if g in (1, 3):
            a, b = G[g - 1], G[g]
            A(f"  v_cndmask_b32_e64 {TX}, v{b}, v{a}, s[40:41]")
            A(f"  v_cndmask_b32_e64 v{a}, v{a}, v{b}, s[40:41]")
            A("  s_nop 0")
            A(f"  v_add_f32_dpp v{a}, {TX}, v{a} quad_perm:[2,3,0,1] {DPP}")
    TT = f"v{G[0]}"
    A(f"  v_cndmask_b32_e64 {TX}, v{G[2]}, v{G[0]}, s[42:43]")
    A(f"  v_cndmask_b32_e64 {TT}, v{G[0]}, v{G[2]}, s[42:43]")
    A("  s_nop 0")
    A(f"  v_add_f32_dpp {TT}, {TX}, {TT} quad_perm:[1,0,3,2] {DPP}")
    A(f"  v_mul_f32 {TT}, s35, {TT}")
    A(f"  v_cndmask_b32_e64 {TT}, {FILL}, {TT}, s[44:45]")
    A("  s_nop 1")
    A(f"  v_max_f32_dpp {T0}, {TT}, {TT} row_ror:8 {DPP}")
    for sh in (4, 2, 1):
        A("  s_nop 1")
        A(f"  v_max_f32_dpp {T0}, {T0}, {T0} row_ror:{sh} {DPP}")
    stamp(4)
    A(f"  ds_write_b32 {LMX}, {T0} offset:{LDS_MAX}")
    A("  s_waitcnt lgkmcnt(0)")
    A("  s_barrier")
    stamp(3)
    for k in range(4):
        A(f"  ds_read_b128 v[{KB+4*k}:{KB+4*k+3}], {LRD} offset:{LDS_MAX+16*k}")
    for k in range(4):
        A(f"  s_waitcnt lgkmcnt({3-k})")
        A(f"  v_max3_f32 {T0}, {T0}, v{KB+4*k}, v{KB+1+4*k}")
        A(f"  v_max3_f32 {T0}, {T0}, v{KB+4*k+2}, v{KB+3+4*k}")
    A(f"  v_sub_f32 {TT}, {TT}, {T0}")
    A(f"  v_exp_f32 {TT}, {TT}")
    A("  s_nop 0")
    A(f"  v_cvt_pk_bf16_f32 {PH}, {TT}, {TT}")
    A(f"  v_add_f32_dpp {T1}, {TT}, {TT} row_ror:8 {DPP}")
    A(f"  v_and_b32 {PL}, 0xffff0000, {PH}")
    A(f"  v_sub_f32 {PL}, {TT}, {PL}")
    A(f"  v_add_f32_dpp {T1}, {T1}, {T1} row_ror:4 {DPP}")
    A(f"  v_cvt_pk_bf16_f32 {PL}, {PL}, {PL}")
    A("  s_nop 0")
    A(f"  v_add_f32_dpp {T1}, {T1}, {T1} row_ror:2 {DPP}")
    A("  s_nop 1")
    A(f"  v_add_f32_dpp {T1}, {T1}, {T1} row_ror:1 {DPP}")
    A(f"  ds_write_b32 {LMX}, {T1} offset:{LDS_L}")
    A("  s_waitcnt lgkmcnt(0)")
    A("  s_barrier")
    stamp(1)
    A("  s_cmp_lg_u32 s30, 0")
    A("  s_cbranch_scc1 L_noml")
    for k in range(4):
        A(f"  ds_read_b128 v[{KB+4*k}:{KB+3+4*k}], {LRD} offset:{LDS_L+16*k}")
    A("  s_waitcnt lgkmcnt(0)")
    for k in range(4):
        A(f"  v_pk_add_f32 v[{KB+4*k}:{KB+4*k+1}], v[{KB+4*k}:{KB+4*k+1}], v[{KB+4*k+2}:{KB+4*k+3}]")
    A(f"  v_pk_add_f32 v[{KB}:{KB+1}], v[{KB}:{KB+1}], v[{KB+4}:{KB+5}]")
    A(f"  v_pk_add_f32 v[{KB+8}:{KB+9}], v[{KB+8}:{KB+9}], v[{KB+12}:{KB+13}]")
    A(f"  v_pk_add_f32 v[{KB}:{KB+1}], v[{KB}:{KB+1}], v[{KB+8}:{KB+9}]")
    A(f"  v_add_f32 v{Q+1}, v{KB}, v{KB+1}")
    A(f"  v_min_u32 v{Q}, -2, {T0}")
    A(f"  v_min_u32 v{Q+1}, -2, v{Q+1}")
    A(f"  v_mov_b32 v{Q+2}, s38")
    A(f"  global_store_dwordx3 {AML}, v[{Q}:{Q+2}], s[18:19] sc1")
    A("L_noml:")
    issue_v(12)
    A("  s_cmp_lg_u32 s30, 1")
    A("  s_cbranch_scc1 L_nocnt")
    A(f"  global_load_dword {CNT}, {ACNT}, s[16:17] sc1")
    A("L_nocnt:")
    issue_v(NL)
    A("  s_cmp_gt_u32 s30, 1")
    A("  s_cbranch_scc1 L_pv")
    A("  s_cmp_eq_u32 s30, 1")
    A("  s_cbranch_scc1 L_w1")
    A("  s_lshl_b32 s36, s31, 10")
    A(f"  v_lshrrev_b32 {T0}, 1, {R}")
    A(f"  v_lshlrev_b32 {ASLOT}, 9, {T0}")
    A(f"  v_lshl_add_u32 {ASLOT}, {C}, 5, {ASLOT}")
    A(f"  v_and_b32 {T0}, 1, {R}")
    A(f"  v_lshl_add_u32 {ASLOT}, {T0}, 4, {ASLOT}")
    A(f"  v_add_u32 {ASLOT}, s36, {ASLOT}")
    A(f"  v_add_u32 {AFAST}, {FAST_OFF}, {ASLOT}")
    A("  s_branch L_pv")
    A("L_w1:")
    A("  s_lshl_b32 s36, s28, 14")
    A("  s_lshl_b32 s37, s29, 6")
    A("  s_add_u32 s36, s36, s37")
    A(f"  v_lshlrev_b32 {ASLOT}, 12, {R}")
    A(f"  v_lshl_add_u32 {ASLOT}, {C}, 2, {ASLOT}")
    A(f"  v_add_u32 {ASLOT}, s36, {ASLOT}")
    A("  s_lshl_b32 s36, s28, 9")
    A("  s_lshr_b32 s37, s29, 3")
    A("  s_lshl_b32 s37, s37, 4")
    A("  s_add_u32 s36, s36, s37")
    A(f"  s_add_u32 s36, s36, {ML_OFF}")
    A(f"  v_and_b32 {T0}, 3, {C}")
    A(f"  v_lshl_add_u32 {T0}, {R}, 2, {T0}")
    A(f"  v_lshlrev_b32 {AML}, 5, {T0}")
    A(f"  v_add_u32 {AML}, s36, {AML}")
    REC = 28

    def pv(w1):
        for i in range(NL):
            n = NL - 1 - i
            if w1 and i != 12:
                n += 1
            lam = bitrev4(i)
            ab = KB + 2 * (i % 4)
            for w, M in enumerate((M0, M1)):
                A(f"  v_and_b32_dpp v{ab+w}, {PH}, {M} row_newbcast:{lam} row_mask:0xf bank_mask:0x5")
                A(f"  v_and_b32_dpp v{ab+w}, {PL}, {M} row_newbcast:{lam} row_mask:0xf bank_mask:0xa")
            A(f"  s_waitcnt vmcnt({n})")
            A("  s_nop 0")
            c0 = "0" if i == 0 else f"v[{D0}:{D0+3}]"
            c1 = "0" if i == 0 else f"v[{D1}:{D1+3}]"
            A(f"  v_mfma_f32_16x16x16_bf16 v[{D0}:{D0+3}], v[{ab}:{ab+1}], v[{VB+4*i}:{VB+4*i+1}], {c0}")
            A(f"  v_mfma_f32_16x16x16_bf16 v[{D1}:{D1+3}], v[{ab}:{ab+1}], v[{VB+4*i+2}:{VB+4*i+3}], {c1}")
            if w1 and i == 12:
                A(f"  global_load_dwordx3 v[{REC}:{REC+2}], {AML}, s[18:19] sc1")
    stamp(5)
    pv(True)
    A("  s_branch L_pvdone")
    A("L_pv:")
    pv(False)
    A("L_pvdone:")
    stamp(6)
    A("  s_nop 7")
    for k in range(4):
        A(f"  v_permlane16_swap_b32 v{D0+k}, v{D1+k}")
    A(f"  v_pk_add_f32 v[{D0}:{D0+1}], v[{D0}:{D0+1}], v[{D1}:{D1+1}]")
    A(f"  v_pk_add_f32 v[{D0+2}:{D0+3}], v[{D0+2}:{D0+3}], v[{D1+2}:{D1+3}]")
    A(f"  ds_write_b128 {LWR}, v[{D0}:{D0+3}] offset:{LDS_ACC}")
    A("  s_waitcnt lgkmcnt(0)")
    A("  s_barrier")
    A("  s_cmp_gt_u32 s30, 1")
    A("  s_cbranch_scc1 L_end")
    A("  s_cmp_eq_u32 s30, 1")
    A("  s_cbranch_scc1 L_cons")
    for k in range(1, NW):
        A(f"  ds_read_b128 v[{KB+4*k}:{KB+4*k+3}], {L16} offset:{LDS_ACC+1024*k}")
    for k in range(1, NW):
        A(f"  s_waitcnt lgkmcnt({NW-1-k})")
        A(f"  v_pk_add_f32 v[{D0}:{D0+1}], v[{D0}:{D0+1}], v[{KB+4*k}:{KB+4*k+1}]")
        A(f"  v_pk_add_f32 v[{D0+2}:{D0+3}], v[{D0+2}:{D0+3}], v[{KB+4*k+2}:{KB+4*k+3}]")
    for j in range(4):
        A(f"  v_min_u32 v{D0+j}, -2, v{D0+j}")
    A(f"  global_store_dwordx4 {AFAST}, v[{D0}:{D0+3}], s[18:19]")
    A(f"  global_store_dwordx4 {ASLOT}, v[{D0}:{D0+3}], s[18:19] sc1")
    if stamps:
        A("  s_memrealtime s[96:97]")
        A("  s_waitcnt vmcnt(0)")
        A("  s_memrealtime s[98:99]")
        A("  s_waitcnt lgkmcnt(0)")
        A("  s_lshl_b32 s36, s2, 6")
        A(f"  s_add_u32 s36, s36, {128<<20}")
        A("  v_mov_b32 v7, s36")
        A("  v_mov_b32 v8, s96")
        A("  global_store_dword v7, v8, s[18:19] offset:40")
        A("  v_mov_b32 v8, s98")
        A("  global_store_dword v7, v8, s[18:19] offset:44")
    A("  s_endpgm")
    A("L_cons:")
    stamp(9)
    GA = KB
    GV = KB + 4
    WM, WL = f"v{REC}", f"v{REC+1}"

    def issue():
        for m in range(4):
            A(f"  global_load_dword v{GV+m}, v{GA+m}, s[18:19] offset:{m*1024} sc1")
    A("  s_mov_b32 s39, 0x400000")
    A(f"  v_cmp_gt_u32 vcc, {S}, {CNT}")
    A("  s_cbranch_vccz L_cok")
    A("L_cchk:")
    A(f"  global_load_dword {CNT}, {ACNT}, s[16:17] sc1")
    A("  s_sub_u32 s39, s39, 1")
    A("  s_cbranch_scc1 L_end")
    A("  s_waitcnt vmcnt(0)")
    A(f"  v_cmp_gt_u32 vcc, {S}, {CNT}")
    A("  s_cbranch_vccnz L_cchk")
    A("L_mlpoll:")
    A(f"  global_load_dwordx3 v[{REC}:{REC+2}], {AML}, s[18:19] sc1")
    A("  s_sub_u32 s39, s39, 1")
    A("  s_cbranch_scc1 L_end")
    A("L_cok:")
    A("  s_waitcnt vmcnt(0)")
    A(f"  v_max3_u32 {T0}, v{REC}, v{REC+1}, v{REC+2}")
    A(f"  v_cmp_eq_u32 vcc, -1, {T0}")
    A("  s_cbranch_vccnz L_mlpoll")
    A(f"  v_cmp_eq_u32 vcc, s38, v{REC+2}")
    A(f"  v_mov_b32 {T1}, {FAST_OFF}")
    A(f"  v_mov_b32 {T0}, {WM}")
    if "slowonly" in exp:
        A(f"  v_mov_b32 v{REC+2}, 0")
    else:
        A(f"  v_cndmask_b32 v{REC+2}, 0, {T1}, vcc")
    A("  s_nop 1")
    for m in range(4):
        A(f"  v_add_u32_dpp v{GA+m}, v{REC+2}, {ASLOT} row_newbcast:{m} {DPP}")
    issue()

    def allred(op, reg, tmp):
        for sh in (2, 1):
            A("  s_nop 1")
            A(f"  {op}_dpp {reg}, {reg}, {reg} row_ror:{sh} {DPP}")
        A(f"  v_mov_b32 {tmp}, {reg}")
        A("  s_nop 1")
        A(f"  v_permlane16_swap_b32 {reg}, {tmp}")
        A("  s_nop 1")
        A(f"  {op} {reg}, {reg}, {tmp}")
        A(f"  v_mov_b32 {tmp}, {reg}")
        A("  s_nop 1")
        A(f"  v_permlane32_swap_b32 {reg}, {tmp}")
        A("  s_nop 1")
        A(f"  {op} {reg}, {reg}, {tmp}")
    allred("v_max_f32", T0, T1)
    A(f"  v_sub_f32 {WM}, {WM}, {T0}")
    A(f"  v_exp_f32 {WM}, {WM}")
    A("  s_nop 0")
    A(f"  v_mul_f32 {WL}, {WM}, {WL}")
    allred("v_add_f32", WL, T1)
    A(f"  v_rcp_f32 {WL}, {WL}")
    A("  s_lshl_b32 s36, s31, 5")
    A(f"  v_lshlrev_b32 v{Q}, 1, {C}")
    A(f"  v_mul_f32 {WM}, {WM}, {WL}")
    A(f"  v_add_u32 v{Q}, s36, v{Q}")
    A("  s_branch L_chk")
    A("L_poll:")
    issue()
    A("  s_sub_u32 s39, s39, 1")
    A("  s_cbranch_scc1 L_end")
    A("L_chk:")
    A("  s_waitcnt vmcnt(0)")
    A(f"  v_max3_u32 {T0}, v{GV}, v{GV+1}, v{GV+2}")
    A(f"  v_max_u32 {T0}, {T0}, v{GV+3}")
    A(f"  v_cmp_eq_u32 vcc, -1, {T0}")
    A("  s_cbranch_vccnz L_poll")
    A(f"  v_mul_f32_dpp v{D0}, {WM}, v{GV} row_newbcast:0 {DPP}")
    for m in range(1, 4):
        A(f"  v_fmac_f32_dpp v{D0}, {WM}, v{GV+m} row_newbcast:{m} {DPP}")
    stamp(7)
    A(f"  v_mov_b32 v{D0+1}, v{D0}")
    A("  s_nop 1")
    A(f"  v_permlane16_swap_b32 v{D0}, v{D0+1}")
    A("  s_nop 1")
    A(f"  v_add_f32 v{D0}, v{D0}, v{D0+1}")
    A(f"  v_mov_b32 v{D0+1}, v{D0}")
    A("  s_nop 1")
    A(f"  v_permlane32_swap_b32 v{D0}, v{D0+1}")
    A("  s_nop 1")
    A(f"  v_add_f32 v{D0}, v{D0}, v{D0+1}")
    A(f"  v_cvt_pk_bf16_f32 v{D0}, v{D0}, v{D0}")
    A("  s_mov_b64 exec, 0xffff")
    A(f"  global_store_short v{Q}, v{D0}, s[14:15]")
    if stamps:
        write_stamps()
    A("L_end:")
    A("  s_endpgm")
    A("L_codeend:")
    A('.section .rodata,"a"')
    A(".p2align 6")
    A(f".amdhsa_kernel {NAME}_kernel")
    A(f"  .amdhsa_next_free_vgpr {NVGPR}")
    A(f"  .amdhsa_next_free_sgpr {102 if stamps else 48}")
    A(f"  .amdhsa_accum_offset {(NVGPR+3)//4*4}")
    A("  .amdhsa_group_segment_fixed_size 0")
    A("  .amdhsa_kernarg_size 64")
    A("  .amdhsa_user_sgpr_count 2")
    A("  .amdhsa_user_sgpr_kernarg_segment_ptr 1")
    A("  .amdhsa_system_sgpr_workgroup_id_x 1")
    A("  .amdhsa_float_denorm_mode_32 3")
    A(".end_amdhsa_kernel")
    return "\n".join(o) + "\n"


if __name__ == "__main__":
    ap = argparse.ArgumentParser()
    ap.add_argument("-o", default="cdna_kernels/" + NAME + ".s")
    ap.add_argument("--stamps", action="store_true")
    ap.add_argument("--vfirst", type=int, default=4)
    ap.add_argument("--PF", type=int, default=2)
    ap.add_argument("--exp", default="")
    ap.add_argument("--PF2", type=int, default=0)
    ap.add_argument("--CPF", action="store_true")
    a = ap.parse_args()
    open(a.o, "w").write(gen(a.stamps, a.vfirst, a.PF, a.exp, a.PF2, a.CPF))
```
